```python
import torch

def _softmax(x, axis=-1):
    return torch.softmax(x, dim=axis)
def _gelu(x):
    return torch.nn.functional.gelu(x, approximate="tanh")
def _silu(x):
    return torch.nn.functional.silu(x)
def _sigmoid(x):
    return torch.sigmoid(x)
def _layernorm(x, axis=-1, eps=1e-5):
    m = x.mean(dim=axis, keepdim=True)
    v = x.var(dim=axis, keepdim=True, unbiased=False)
    return (x - m) / torch.sqrt(v + eps)
def _scatter_add(tgt, idx, src, axis=0):
    return tgt.clone().index_add_(axis, idx, src)
def _segment_sum(src, seg, n):
    out = torch.zeros((n,) + src.shape[1:], dtype=src.dtype)
    return out.index_add_(0, seg, src)
def _pad(x, pw):
    flat = tuple(v for pair in reversed(pw) for v in pair)
    return torch.nn.functional.pad(x, flat)

kernel_name = 'standalone__gqa_block_cached__near_ridge'

def setup_inputs():

    _w = (lambda a: (lambda t: t.to(torch.bfloat16) if t.is_floating_point() else t)(torch.as_tensor(a)))
    B, Sq, D = 8, 160, 640
    Hq, Hkv, Sk, Dh = 32, 32, 1024, 128
    assert Hq % Hkv == 0, (Hq, Hkv)
    return {
        "x": _w((lambda *s: torch.randn(*s, dtype=torch.bfloat16) * 0.8)(B, Sq, D)),
        "k_cache": _w((lambda *s: torch.randn(*s, dtype=torch.bfloat16) * 0.8)(B, Hkv, Sk, Dh)),
        "v_cache": _w((lambda *s: torch.randn(*s, dtype=torch.bfloat16) * 0.05)(B, Hkv, Sk, Dh)),
        "wq": _w((lambda *s: torch.randn(*s, dtype=torch.bfloat16) * 0.8)(D, Hq * Dh) * (D ** -0.5)),
        "wo": _w((lambda *s: torch.randn(*s, dtype=torch.bfloat16) * 0.05)(Hq * Dh, D) * ((Hq * Dh) ** -0.5)),
    }

def reference(x, k_cache, v_cache, wq, wo):
    B, Sq, D = x.shape
    Hq, Dh = 32, 128
    Hkv = k_cache.shape[1]
    rep = Hq // Hkv
    q = (lambda x, *d: x.permute(*d))((x @ wq).reshape(B, Sq, Hq, Dh), 0, 2, 1, 3)
    k = (lambda x, n, axis: torch.repeat_interleave(x, n, dim=axis))(k_cache, rep, axis=1)
    v = (lambda x, n, axis: torch.repeat_interleave(x, n, dim=axis))(v_cache, rep, axis=1)
    scores = torch.einsum("bhqd,bhkd->bhqk", q, k) * (Dh ** -0.5)
    p = _softmax(scores, axis=-1)
    o = torch.einsum("bhqk,bhkd->bhqd", p, v)
    return (lambda x, *d: x.permute(*d))(o, 0, 2, 1, 3).reshape(B, Sq, Hq * Dh) @ wo
```

```python
import re

def R(kind, lo, n=1):
    return [(kind, lo + i) for i in range(n)]

def rs(kind, lo, n=1):
    return f"{kind}{lo}" if n == 1 else f"{kind}[{lo}:{lo+n-1}]"

class Reg:
    def __init__(self, kind, lo, n=1):
        self.kind, self.lo, self.n = kind, lo, n
    def __str__(self): return rs(self.kind, self.lo, self.n)
    def regs(self): return R(self.kind, self.lo, self.n)
    def sub(self, off, n=1):
        assert off + n <= self.n, (self, off, n)
        return Reg(self.kind, self.lo + off, n)
    def __getitem__(self, i): return self.sub(i, 1)

def V(lo, n=1): return Reg('v', lo, n)
def Ac(lo, n=1): return Reg('a', lo, n)
def S(lo, n=1): return Reg('s', lo, n)
VCC = Reg('vcc', 0, 1); VCC.__class__ = type('VCCR', (Reg,), {'__str__': lambda s: 'vcc'})
M0 = Reg('m0', 0, 1); M0.__class__ = type('M0R', (Reg,), {'__str__': lambda s: 'm0'})

def regs_of(*ops):
    out = []
    for o in ops:
        if isinstance(o, Reg): out += o.regs()
    return out

class I:
    __slots__ = ("txt", "cls", "rd", "wr", "c", "passes", "tag", "trans", "perm", "rdlane", "states", "data")
    def __init__(self, txt, cls, rd=(), wr=(), c=(), passes=0, tag=None, trans=False, perm=False, rdlane=False, states=1, data=()):
        self.txt, self.cls = txt, cls
        self.rd, self.wr, self.c = set(rd), set(wr), set(c)
        self.passes, self.tag, self.trans, self.perm, self.rdlane, self.states = passes, tag, trans, perm, rdlane, states
        self.data = set(data)

TRANS = ("v_exp_f32", "v_log_f32", "v_rcp_f32", "v_rsq_f32", "v_sqrt_f32")

def valu(op, dst, *src, mods="", extra_rd=(), extra_wr=()):
    txt = f"{op} {dst}, " + ", ".join(str(s) for s in src) + (" " + mods if mods else "")
    rd = regs_of(*src) + list(extra_rd)
    wr = regs_of(dst) + list(extra_wr)
    perm = op.startswith("v_permlane")
    if perm:
        rd += regs_of(dst); wr += regs_of(*src)
    if op.startswith("v_fmac") or op.startswith("v_pk_fmac"): rd += regs_of(dst)
    return I(txt, "valu", rd, wr, trans=op in TRANS, perm=perm, rdlane=op.startswith("v_readfirstlane") or op.startswith("v_readlane"))

class Neg(Reg):
    def __init__(self, r): super().__init__(r.kind, r.lo, r.n)
    def __str__(self): return "-" + rs(self.kind, self.lo, self.n)

def salu(op, dst, *src):
    txt = f"{op} " + ", ".join(str(s) for s in ((dst,) if dst is not None else ()) + src)
    return I(txt, "salu", regs_of(*src), regs_of(dst) if dst is not None else [])

def mfma32(d, a, b, c):
    return I(f"v_mfma_f32_32x32x16_bf16 {d}, {a}, {b}, {c}", "mfma", regs_of(a, b), regs_of(d), regs_of(c), passes=8)
def mfma16(d, a, b, c):
    return I(f"v_mfma_f32_16x16x32_bf16 {d}, {a}, {b}, {c}", "mfma", regs_of(a, b), regs_of(d), regs_of(c), passes=4)

def ds_read(op, dst, addr, off=0):
    assert 0 <= off < 65536, off
    return I(f"{op} {dst}, {addr}" + (f" offset:{off}" if off else ""), "ds_rd", regs_of(addr), regs_of(dst))
def ds_write(op, addr, src, off=0):
    assert 0 <= off < 65536, off
    return I(f"{op} {addr}, {src}" + (f" offset:{off}" if off else ""), "ds_wr", regs_of(addr, src), [], data=regs_of(src))

def buf_load(op, dst, voff, srd, soff, off=0, pol="", tag=None):
    assert 0 <= off < 4096
    return I(f"{op} {dst}, {voff}, {srd}, {soff} offen" + (f" offset:{off}" if off else "") + (" " + pol if pol else ""), "vm_ld", regs_of(voff, srd, soff), regs_of(dst), tag=tag)
def buf_dma(voff, srd, soff, off=0, pol="", tag=None):
    assert 0 <= off < 4096
    return I(f"buffer_load_dwordx4 {voff}, {srd}, {soff} offen" + (f" offset:{off}" if off else "") + (" " + pol if pol else "") + " lds", "dma", regs_of(voff, srd, soff, M0), [], tag=tag)
def buf_store(op, src, voff, srd, soff, off=0, pol="", tag=None):
    assert 0 <= off < 4096
    return I(f"{op} {src}, {voff}, {srd}, {soff} offen" + (f" offset:{off}" if off else "") + (" " + pol if pol else ""), "vm_st", regs_of(src, voff, srd, soff), [], tag=tag, data=regs_of(src))

def raw(txt, cls="other", rd=(), wr=(), states=1): return I(txt, cls, rd, wr, states=states)
def nop(n): return I(f"s_nop {n}", "nop", states=n + 1)
def label(name): return I(name + ":", "label", states=0)
def barrier(): return I("s_barrier", "barrier")
def wait_lgkm(n=0): return I(f"@lgkm {n}", "wait_lgkm", tag=n)
def wait_lgkm_for(reg): return I("@lgkmfor", "wait_lgkm_for", rd=regs_of(reg))
def wait_lgkm_writes(): return I("@lgkmwr", "wait_lgkm_wr")
def wait_vm_tag(tag): return I("@vmtag", "wait_vm_tag", tag=tag)
def wait_vm(n=0): return I(f"@vm {n}", "wait_vm", tag=n)
def comment(t): return I("; " + t, "comment", states=0)

def insert_waits(prog):
    out = []
    lg = []
    vm = []
    def emit_wait(lgn=None, vmn=None):
        parts = []
        if vmn is not None:
            vmn = min(vmn, 63); parts.append(f"vmcnt({vmn})"); del vm[:len(vm) - vmn if len(vm) > vmn else 0]
        if lgn is not None:
            lgn = min(lgn, 15); parts.append(f"lgkmcnt({lgn})"); del lg[:len(lg) - lgn if len(lg) > lgn else 0]
        if out and out[-1].cls == "wait" and out[-1].tag == "auto":
            prev = out[-1].txt.split()[1:]
            keys = {p.split("(")[0]: p for p in prev}
            for p in parts: keys[p.split("(")[0]] = p
            out[-1].txt = "s_waitcnt " + " ".join(keys.values())
        else:
            out.append(I("s_waitcnt " + " ".join(parts), "wait", tag="auto"))
    for ins in prog:
        if ins.cls == "wait_lgkm":
            if len(lg) > ins.tag: emit_wait(lgn=ins.tag)
            continue
        if ins.cls == "wait_lgkm_wr":
            idx = [i for i, d in enumerate(lg) if not d]
            if idx: emit_wait(lgn=len(lg) - 1 - idx[-1])
            continue
        if ins.cls == "wait_vm":
            if len(vm) > ins.tag: emit_wait(vmn=ins.tag)
            continue
        if ins.cls == "wait_vm_tag":
            idx = [i for i, (t, _) in enumerate(vm) if t == ins.tag]
            if idx: emit_wait(vmn=len(vm) - 1 - idx[-1])
            continue
        touch = ins.rd | ins.wr | ins.c
        idx = [i for i, d in enumerate(lg) if d & touch]
        if idx: emit_wait(lgn=len(lg) - 1 - idx[-1])
        idx = [i for i, (_, d) in enumerate(vm) if d & touch]
        if idx: emit_wait(vmn=len(vm) - 1 - idx[-1])
        if ins.cls == "wait_lgkm_for": continue
        out.append(ins)
        if ins.cls == "ds_rd": lg.append(set(ins.wr))
        elif ins.cls == "ds_wr": lg.append(set())
        elif ins.cls == "vm_ld": vm.append((ins.tag, set(ins.wr)))
        elif ins.cls in ("dma", "vm_st"): vm.append((ins.tag, set()))
        elif ins.cls == "wait_vm0":
            del vm[:]
        elif ins.cls == "wait_lg0":
            del lg[:]
        elif ins.cls == "wait_all":
            del lg[:]; del vm[:]
    return out

def need_states(p, c):
    n = 0
    isv = lambda s: {r for r in s if r[0] in "va" and r[0] != 'vcc'}
    iss = lambda s: {r for r in s if r[0] in ("s", "vcc")}
    if p.cls == "valu":
        w = isv(p.wr)
        if c.cls == "mfma" and w & (c.rd | c.c): n = max(n, 2)
        if c.cls == "valu":
            if p.trans and not c.trans and w & c.rd: n = max(n, 1)
            if c.perm and w & c.rd: n = max(n, 2)
            if c.rdlane and w & c.rd: n = max(n, 1)
        sw = iss(p.wr)
        if sw:
            if c.cls == "valu" and sw & c.rd: n = max(n, 2)
            if c.cls in ("vm_ld", "vm_st", "dma") and sw & c.rd: n = max(n, 5)
            if c.cls in ("salu", "branch") and sw & c.rd: n = max(n, 1)
    if p.cls == "mfma":
        big = {8: 12, 4: 8}[p.passes]; mid = {8: 10, 4: 6}[p.passes]; war = {8: 7, 4: 3}[p.passes]
        if c.cls == "mfma":
            if p.wr & c.rd: n = max(n, big)
            if p.wr & c.c and not (p.wr == c.c and p.passes == c.passes): n = max(n, mid)
            if p.wr & c.wr and not (p.wr == c.c and p.passes == c.passes): n = max(n, mid)
        elif c.cls in ("valu", "ds_rd", "ds_wr", "vm_ld", "vm_st", "dma"):
            if p.wr & (c.rd | c.wr): n = max(n, big)
            if p.c & c.wr: n = max(n, war)
    if p.cls == "salu" and ("m0", 0) in p.wr and c.cls == "dma": n = max(n, 1)
    if p.cls in ("vm_st", "ds_wr") and len(p.data) >= 3 and p.data & c.wr: n = max(n, 2)
    return n

def insert_nops(prog, verbose=False):
    out = []
    added = 0
    for ins in prog:
        if ins.cls not in ("label", "comment", "nop", "wait", "wait_lg0", "wait_vm0", "barrier"):
            dist = 0; need = 0
            for p in reversed(out):
                if dist >= 20: break
                k = need_states(p, ins) - dist
                need = max(need, k)
                dist += p.states
            while need > 0:
                k = min(need, 16); out.append(nop(k - 1)); need -= k; added += k
        out.append(ins)
    if verbose: print("nop states added:", added)
    return out

def finish(prog, verbose=False):
    prog = insert_waits(prog)
    prog = insert_nops(prog, verbose)
    return prog

def text(prog):
    return "\n".join(("" if i.cls in ("label",) else "  ") + i.txt for i in prog) + "\n"

def kernel_header(name):
    return f".text\n.globl {name}\n.p2align 8\n.type {name},@function\n{name}:\n"

def kernel_desc(name, vgpr, accum, sgpr=102):
    return (f'.section .rodata,"a"\n.p2align 6\n.amdhsa_kernel {name}\n  .amdhsa_next_free_vgpr {vgpr}\n  .amdhsa_next_free_sgpr {sgpr}\n'
            f"  .amdhsa_accum_offset {accum}\n  .amdhsa_group_segment_fixed_size 0\n  .amdhsa_kernarg_size 64\n  .amdhsa_user_sgpr_count 2\n"
            f"  .amdhsa_user_sgpr_kernarg_segment_ptr 1\n  .amdhsa_system_sgpr_workgroup_id_x 1\n  .amdhsa_float_denorm_mode_32 3\n.end_amdhsa_kernel\n")
```

```python
import sys, json, math, struct
from asmlib import *

def fbits(x): return "0x%08x" % struct.unpack("<I", struct.pack("<f", x))[0]
K_ = 1024
DEF = dict(kvpol="nt", qpol="", stamps=0, rot=1, opol="sc1", wpol="", outpol="", tail=1, thr=65536.0, x="",
           plan={"K0": 6, "K1": 7, "K2": 8, "V0": 8, "K3": 9})

KS = [16 * K_ * i for i in range(4)]
VS = [64 * K_ + 16 * K_ * i for i in range(4)]
STG = {1: 52 * K_, 2: 88 * K_, 0: 124 * K_}
QX = 84 * K_
MX = 32 * K_
MLN = 30720
MLL = 131072
UNIT = 5120
EXC = [0, 13312, 26 * UNIT, 26 * UNIT + 13312]
PB = 20 << 20
FL = 28 << 20
LDS1 = 163840
STAMP_OFF = 16 << 20

sX, sWQ, sK, sV, sWS = S(20, 4), S(24, 4), S(28, 4), S(32, 4), S(36, 4)
sB, sH, sW, sROT = S(40), S(41), S(42), S(43)
sWQo, sXo, sKVo, sW4K, sT, sTHR, sT2, sT3 = S(44), S(45), S(46), S(47), S(48), S(49), S(50), S(51)
sRET = S(52, 2); sC2 = S(54, 2); sWQw, sM0x, sRG, sKG = S(56), S(57), S(58), S(59)
sST = lambda i: S(60 + i)
sSTT = S(96, 2)
vTID, vL, vL16, vT = V(0), V(1), V(2), V(3)
vKD = [V(4 + j) for j in range(4)]; vVD = [V(8), V(9)]
vKR = [V(10 + j) for j in range(4)]; vVR = [V(14 + j) for j in range(8)]
vLs = [V(22 + j) for j in range(5)]; vBS = [V(27 + j) for j in range(5)]
vE = [V(32 + j) for j in range(4)]; vT1, vT2, vT3, vT4 = V(36), V(37), V(38), V(39)
vS = [V(40, 40), V(80, 40)]; vP = [V(120, 20), V(140, 20)]; vNM = V(160, 20)
vACC = lambda a, qb: V(40 + 4 * (5 * a + qb), 4)
vWD = [V(180 + j) for j in range(4)]; vXD = [V(184 + j) for j in range(5)]
vQA = [[V(190 + j) for j in range(4)], [V(196 + j) for j in range(4)]]
vQB = [[V(194), V(195)], [V(200), V(201)]]
vTMP = V(204, 20)
vWO = [V(224 + j) for j in range(5)]; vCNT = V(229)
vAR = [[V(230 + j) for j in range(5)], [V(235 + j) for j in range(5)]]; vBO = [V(240 + j) for j in range(5)]
vU = [V(246, 4), V(250, 4)]; vZ = V(254)
sWO, sDBG, sOUT = S(80, 4), S(84, 4), S(88, 4)
sJ, sHG, sSPIN, sBo = S(92), S(93), S(94), S(95)
gACC = lambda s_: V(40 + 4 * s_, 4)
gB = lambda u, ii: V(140 + 20 * (u & 3) + 4 * ii, 4)
aO = lambda j, qb: Ac(4 * (5 * j + qb), 4)
aRING = [Ac(160 + 4 * i, 4) for i in range(4)]
aQ = lambda qb, ks: Ac(176 + 4 * (4 * qb + ks), 4)
aFA = lambda p, a: Ac(36 * p + 4 * a, 4)
aFB = lambda p, qb: Ac(36 * p + 16 + 4 * qb, 4)
flat = lambda g: [i for x in g for i in x]

class K1:
    def __init__(self, P):
        self.P = P; self.p = []; self.nst = 0; self.stubs = []
    def A(self, *x):
        for i in x:
            if isinstance(i, list): self.p += i
            else: self.p.append(i)
    def stamp(self):
        if self.P["stamps"]:
            i = self.nst; self.nst += 1
            op = 's_memrealtime' if self.P['stamps'] == 1 else 's_memtime'
            return [raw(f"{op} {sSTT} ; stamp"), raw("s_waitcnt lgkmcnt(0)", "wait_lg0"), salu("s_mov_b32", sST(i), sSTT[0])]
        return []

    def prologue(self):
        A, P = self.A, self.P
        A(raw("s_cmp_ge_u32 s2, 256"), raw("s_cbranch_scc1 L1_done", "branch"))
        A(self.stamp())
        if P["stamps"]: A(raw("s_memtime s[98:99]"))
        A(raw("s_load_dwordx8 s[4:11], s[0:1], 0"), raw("s_load_dwordx8 s[12:19], s[0:1], 32"))
        A(valu("v_lshrrev_b32", vT, 6, vTID), valu("v_and_b32", vL, 63, vTID), valu("v_readfirstlane_b32", sW, vT))
        A(salu("s_and_b32", sB, S(2), 1), salu("s_lshl_b32", sB, sB, 2), salu("s_lshr_b32", sT, S(2), 6), salu("s_add_u32", sB, sB, sT))
        A(salu("s_lshr_b32", sH, S(2), 1), salu("s_and_b32", sH, sH, 3), salu("s_lshl_b32", sH, sH, 3), salu("s_lshr_b32", sT, S(2), 3), salu("s_and_b32", sT, sT, 7), salu("s_add_u32", sH, sH, sT))
        if P["rot"]:
            A(salu("s_and_b32", sT, sB, 3), salu("s_and_b32", sT2, sH, 7), salu("s_mul_i32", sT, sT, 10), salu("s_mul_i32", sT2, sT2, 5),
              salu("s_add_u32", sROT, sT, sT2), salu("s_lshr_b32", sROT, sROT, 2), salu("s_cmp_ge_u32", None, sROT, 10),
              salu("s_cselect_b32", sT, 10, 0), salu("s_sub_u32", sROT, sROT, sT))
        else:
            A(salu("s_mov_b32", sROT, 0))
        A(salu("s_lshl_b32", sW4K, sW, 12), salu("s_lshl_b32", sWQw, sW, 17), salu("s_mul_i32", sM0x, sW, 5120))
        row4, c16 = vT1, vT2
        A(valu("v_lshrrev_b32", row4, 4, vL), valu("v_and_b32", c16, 15, vL))
        A(valu("v_lshlrev_b32", vT, 1, row4), valu("v_xor_b32", vT, vT, c16), valu("v_lshlrev_b32", vT, 4, vT))
        A(valu("v_lshl_add_u32", vWD[0], row4, 13, vT), valu("v_lshl_add_u32", vVD[0], row4, 8, vT))
        A(valu("v_add_u32", vWD[1], 32768 - 1024, vWD[0]), valu("v_xor_b32", vWD[2], 128, vWD[0]))
        A(valu("v_add_u32", vWD[3], 3 * (32768 - 1024), vWD[2]), valu("v_add_u32", vWD[2], 2 * (32768 - 1024), vWD[2]))
        row8, c8 = vT3, vT4
        A(valu("v_lshrrev_b32", row8, 3, vL), valu("v_and_b32", c8, 7, vL), salu("s_and_b32", sRG, sW, 1), salu("s_lshl_b32", sT2, sRG, 6), salu("s_mul_i32", sT, sW, 5 * 8 * 1280))
        A(valu("v_lshrrev_b32", vT, 1, row8), valu("v_xor_b32", vT, vT, c8), valu("v_lshlrev_b32", vT, 4, vT), valu("v_xor_b32", vT, sT2, vT))
        A(valu("v_mul_u32_u24", row8, 1280, row8), valu("v_add_u32", row8, sT, row8), valu("v_add_u32", vXD[0], row8, vT), valu("v_xor_b32", vT, 64, vT), valu("v_add_u32", vXD[1], row8, vT))
        A(valu("v_add_u32", vXD[2], 2 * (10240 - 1024), vXD[0]), valu("v_add_u32", vXD[3], 3 * (10240 - 1024), vXD[1]), valu("v_add_u32", vXD[4], 4 * 10240, vXD[0]), valu("v_add_u32", vXD[1], 10240 - 1024, vXD[1]))
        A(raw("s_waitcnt lgkmcnt(0)", "wait"))
        A(salu("s_lshl_b32", sT, sH, 8), salu("s_add_u32", sWQ[0], S(10), sT), salu("s_addc_u32", sWQ[1], S(11), 0), salu("s_sub_u32", sWQ[2], 5242880, sT), salu("s_mov_b32", sWQ[3], "0x20000"))
        A(salu("s_mul_i32", sT, sB, 204800), salu("s_add_u32", sX[0], S(4), sT), salu("s_addc_u32", sX[1], S(5), 0), salu("s_mov_b32", sX[2], 204800), salu("s_mov_b32", sX[3], "0x20000"))
        A(flat(self.chunk_dma(0)))
        A(salu("s_lshl_b32", sT, sB, 5), salu("s_add_u32", sT, sT, sH), salu("s_lshl_b32", sT, sT, 18))
        if P.get("hot"): A(salu("s_mov_b32", sT, 0))
        A(salu("s_add_u32", sK[0], S(6), sT), salu("s_addc_u32", sK[1], S(7), 0), salu("s_mov_b32", sK[2], 262144), salu("s_mov_b32", sK[3], "0x20000"))
        A(salu("s_add_u32", sV[0], S(8), sT), salu("s_addc_u32", sV[1], S(9), 0), salu("s_mov_b32", sV[2], 262144), salu("s_mov_b32", sV[3], "0x20000"))
        A(salu("s_mov_b32", sWS[0], S(18)), salu("s_mov_b32", sWS[1], S(19)), salu("s_mov_b32", sWS[2], 32 << 20), salu("s_mov_b32", sWS[3], "0x20000"))
        A(salu("s_mov_b32", sTHR, fbits(P["thr"])), salu("s_lshr_b32", sKG, sW, 1))
        c = fbits(math.log2(math.e) / math.sqrt(128.0))
        A(salu("s_mov_b32", sC2[0], c), salu("s_mov_b32", sC2[1], c))
        A(valu("v_xor_b32", vVD[1], 128, vVD[0]), valu("v_lshlrev_b32", vL16, 4, vL))
        for j in range(4):
            A(valu("v_add_u32", vT, 4 * j, row4), valu("v_xor_b32", vT, vT, c16), valu("v_lshlrev_b32", vT, 4, vT), valu("v_lshl_add_u32", vKD[j], row4, 8, vT))
        g, r, cc, q, t, f, b0 = (vTMP[i] for i in range(7))
        A(valu("v_lshrrev_b32", g, 4, vL), valu("v_bfe_u32", r, vL, 2, 2), valu("v_and_b32", cc, 3, vL), valu("v_and_b32", q, 15, vL))
        A(valu("v_and_b32", f, 1, g), valu("v_lshl_add_u32", f, f, 2, r))
        A(valu("v_lshl_add_u32", b0, g, 3, r), valu("v_lshlrev_b32", b0, 8, b0), valu("v_lshl_add_u32", b0, cc, 3, b0))
        A(salu("s_lshl_b32", sT, sKG, 2), valu("v_xor_b32", t, sT, f), valu("v_lshl_add_u32", b0, t, 5, b0))
        for a in range(4):
            A(valu("v_xor_b32", t, 32 * a, b0), valu("v_add_u32", vQA[0][a], STG[1], t), valu("v_add_u32", vQA[1][a], STG[0], t))
        A(valu("v_lshrrev_b32", t, 1, q), valu("v_xor_b32", t, t, g), valu("v_lshlrev_b32", t, 4, t), valu("v_lshl_add_u32", b0, q, 7, t))
        A(salu("s_mul_i32", sT, sRG, 10240), salu("s_add_u32", sT2, sT, STG[1] + 16384), salu("s_add_u32", sT3, sT, STG[0] + 16384))
        A(valu("v_xor_b32", t, 64, b0), valu("v_add_u32", vQB[0][0], sT2, b0), valu("v_add_u32", vQB[0][1], sT2, t), valu("v_add_u32", vQB[1][0], sT3, b0), valu("v_add_u32", vQB[1][1], sT3, t))
        A(flat(self.chunk_dma(1)))
        A(salu("s_lshl_b32", sT, sKG, 13))
        A(valu("v_xor_b32", t, q, g), valu("v_lshlrev_b32", t, 4, t), valu("v_lshl_add_u32", b0, q, 8, t), valu("v_add_u32", b0, sT, b0))
        for ks in range(4): A(valu("v_xor_b32", vKR[ks], 64 * ks, b0))
        A(valu("v_lshl_add_u32", b0, g, 2, r), valu("v_lshlrev_b32", b0, 8, b0), valu("v_lshl_add_u32", b0, cc, 3, b0), salu("s_add_u32", sT, sT, VS[0]), valu("v_add_u32", b0, sT, b0))
        A(salu("s_lshl_b32", sT, sKG, 2), valu("v_xor_b32", t, sT, f), valu("v_lshl_add_u32", b0, t, 5, b0))
        for j in range(8): A(valu("v_xor_b32", vVR[j], 32 * j, b0))
        for qb in range(5): A(valu("v_mov_b32", vLs[qb], 0))
        if P["tail"]:
            A(salu("s_and_b32", sJ, sH, 7), salu("s_lshr_b32", sHG, sH, 3))
            A(salu("s_mul_i32", sT, sJ, 160), salu("s_add_u32", sWO[0], S(12), sT), salu("s_addc_u32", sWO[1], S(13), 0), salu("s_sub_u32", sWO[2], 5242880, sT), salu("s_mov_b32", sWO[3], "0x20000"))
            A(salu("s_mov_b32", sDBG[0], S(16)), salu("s_mov_b32", sDBG[1], S(17)), salu("s_mov_b32", sDBG[2], 256), salu("s_mov_b32", sDBG[3], "0x20000"))
            A(salu("s_mov_b32", sOUT[0], S(14)), salu("s_mov_b32", sOUT[1], S(15)), salu("s_mov_b32", sOUT[2], 1638400), salu("s_mov_b32", sOUT[3], "0x20000"))
            for m in range(5):
                A(valu("v_add_u32", t, 64 * m, vL), valu("v_mul_u32_u24", b0, 6554, t), valu("v_lshrrev_b32", b0, 16, b0), valu("v_mul_u32_u24", vZ, 1280 - 160, b0))
                A(valu("v_lshl_add_u32", vWO[m], t, 4, vZ))
                if 0 < m < 4: A(valu("v_subrev_u32", vWO[m], 1024 * m, vWO[m]))

    def one_lane(self, dst):
        return [valu("v_min_u32", dst, 1, vTID), valu("v_lshlrev_b32", dst, 30, dst)]
    def flag_store(self, val):
        o = self.one_lane(vZ) + [valu("v_mov_b32", vT, val), salu("s_lshl_b32", sT, sB, 5), salu("s_add_u32", sT, sT, sH), salu("s_lshl_b32", sT, sT, 7), salu("s_add_u32", sT, sT, FL)]
        return o + [buf_store("buffer_store_dword", vT, vZ, sWS, sT, 0, "sc1", "flag")]
    def wo_unit(self, i):
        pol = self.P["wpol"]; g = []
        pre = [salu("s_add_u32", sT2, sRG, 2 * i), salu("s_lshr_b32", sT3, sT2, 2), salu("s_add_u32", sT3, sT3, sJ), salu("s_and_b32", sT3, sT3, 3), salu("s_lshl_b32", sT3, sT3, 2),
               salu("s_and_b32", sBo, sT2, 3), salu("s_add_u32", sT3, sT3, sBo), salu("s_lshl_b32", sBo, sKG, 4), salu("s_add_u32", sT3, sT3, sBo), salu("s_lshl_b32", sBo, sHG, 5),
               salu("s_add_u32", sT3, sT3, sBo), salu("s_mul_i32", sBo, sT3, 32 * 1280),
               salu("s_mul_i32", sT3, sKG, 26 if i < 3 else 10), salu("s_add_u32", sT2, sT2, sT3), salu("s_mul_i32", sT2, sT2, UNIT), salu("s_mov_b32", M0, sT2)]
        for m in range(5):
            if m == 4: pre = [salu("s_add_u32", M0, sT2, 4096), nop(0)]
            g.append(pre + [buf_dma(vWO[m], sWO, sBo, 1024 * m if m < 4 else 0, pol, "wo")]); pre = []
        return g
    def poll(self, name, srd, addr, soff, val, cmp):
        return [salu("s_mov_b32", sSPIN, 1 << 18), label(name), buf_load("buffer_load_dword", vT1, addr, srd, soff, 0, "sc1"), raw("s_waitcnt vmcnt(0)", "wait_vm0"),
                salu("s_sub_u32", sSPIN, sSPIN, 1), valu(cmp, VCC, val, vT1), raw(f"s_cbranch_scc1 {name}_x", "branch"), raw(f"s_cbranch_vccnz {name}", "branch", rd=VCC.regs()), label(name + "_x")]
    def chunk_dma(self, c):
        pol = self.P["qpol"]; base = STG[c % 3]; tag = ("c", c); g = []
        pre = [salu("s_lshl_b32", sWQo, sROT, 19), salu("s_add_u32", M0, sW4K, base), salu("s_add_u32", sWQo, sWQo, sWQw)]
        imm = [0, 1024, 2048, 3072]
        for j in range(4):
            g.append((pre if j == 0 else []) + [buf_dma(vWD[j], sWQ, sWQo, imm[j], pol, tag)])
        for j in range(5):
            pre = []
            if j == 0: pre = [salu("s_add_u32", M0, sM0x, base + 16384), salu("s_lshl_b32", sXo, sROT, 7)]
            if j == 4: pre = [salu("s_add_u32", M0, sM0x, base + 16384 + 4096), salu("s_add_u32", sROT, sROT, 1), salu("s_cmp_eq_u32", None, sROT, 10), salu("s_cselect_b32", sROT, 0, sROT)]
            g.append(pre + [buf_dma(vXD[j], sX, sXo, 1024 * j if j < 4 else 0, pol, tag)])
        return g
    def kv_req(self, name):
        kv, n = name[0], int(name[1:]); pol = self.P["kvpol"]; g = []
        srd = sK if kv == "K" else sV; slot = (KS if kv == "K" else VS)[n & 3]
        for j in range(4):
            voff = vKD[j] if kv == "K" else vVD[j & 1]
            pre = [salu("s_add_u32", M0, sW4K, slot), salu("s_add_u32", sKVo, sW4K, n * 16384)] if j == 0 else []
            g.append(pre + [buf_dma(voff, srd, sKVo, 1024 * j, pol, name)])
        return g

    def q_reads(self, c, s):
        st = STG[c % 3]; se = 1 if st == STG[0] else 0; rel = st - (STG[0] if se else STG[1]); p = s & 1
        rA = lambda a, t: ds_read("ds_read_b64_tr_b16", aFA(p, a).sub(2 * t, 2), vQA[se][a], rel + (32 * s + 4 * t) * 256)
        rB = lambda qb: ds_read("ds_read_b128", aFB(p, qb), vQB[se][s], rel + qb * 2048)
        return [rB(0), rA(0, 0), rA(0, 1), rB(1), rB(2), rB(3), rB(4), rA(1, 0), rA(1, 1), rA(2, 0), rA(2, 1), rA(3, 0), rA(3, 1)]
    def qproj(self):
        A, P = self.A, self.P; plan = P["plan"]
        A(flat([flat(self.kv_req(n)) for n in ("K0", "K1", "K2") if plan.get(n) == "pro"]))
        A(wait_vm_tag(("c", 0)), barrier(), self.stamp(), self.q_reads(0, 0))

        slots = [(c, s, i) for c in range(10) for s in range(2) for i in range(20)]
        gaps = {sl: [] for sl in slots}; idx = {sl: k for k, sl in enumerate(slots)}
        nxt = [0]
        def place(groups, start, step):
            k = max(start, nxt[0])
            for grp in groups:
                gaps[slots[min(k, len(slots) - 1)]] += grp; k += step
            nxt[0] = k
        for c in range(10):
            rd = self.q_reads(c, 1)
            for k, r_ in enumerate(rd): gaps[(c, 0, (k * 3) // 2)].append(r_)
            if c < 9:
                rd = self.q_reads(c + 1, 0)
                gaps[(c, 1, 5)] += [wait_lgkm(0), wait_vm_tag(("c", c + 1)), barrier()] + (self.stamp() if P.get("qst") else [])
                for k, r_ in enumerate(rd): gaps[(c, 1, 5 + k)].append(r_)
        place(self.chunk_dma(2), 1, 2)
        for c in range(10):
            for n in ("K0", "K1", "K2", "V0", "K3"):
                if plan.get(n) == c: place(self.kv_req(n), idx[(c, 0, 0)], 2)
            if c + 3 < 10: place(self.chunk_dma(c + 3), idx[(c, 1, 7)], P.get("qsp", 3))
        for (c, s, i) in slots:
            a, qb = divmod(i, 5); p = s
            m = mfma16(vACC(a, qb), aFA(p, a), aFB(p, qb), 0 if (c == 0 and s == 0) else vACC(a, qb))
            A(m, gaps[(c, s, i)])
    def q_finish(self):
        A, P = self.A, self.P
        g, q, t, wa, ra = vTMP[0], vTMP[3], vTMP[4], vTMP[8], vTMP[9]
        A(salu("s_mul_i32", sT, sRG, 20480), salu("s_add_u32", sT, sT, QX), valu("v_add_u32", ra, sT, vL16), salu("s_lshl_b32", sT2, sKG, 11), salu("s_add_u32", sT, sT, sT2))
        A(valu("v_lshrrev_b32", t, 1, g), valu("v_lshlrev_b32", wa, 8, t), valu("v_lshl_add_u32", wa, q, 4, wa), valu("v_and_b32", t, 1, g), valu("v_lshl_add_u32", wa, t, 3, wa), valu("v_add_u32", wa, sT, wa))
        k = 0
        for a in range(4):
            for qb in range(5):
                acc = vACC(a, qb); d = vTMP.sub(12 + 2 * (k % 4), 2); k += 1
                A(valu("v_pk_mul_f32", acc.sub(0, 2), acc.sub(0, 2), sC2), valu("v_pk_mul_f32", acc.sub(2, 2), acc.sub(2, 2), sC2))
                A(valu("v_cvt_pk_bf16_f32", d[0], acc[0], acc[1]), valu("v_cvt_pk_bf16_f32", d[1], acc[2], acc[3]))
                A(ds_write("ds_write_b64", wa, d, qb * 4096 + (a >> 1) * 1024 + (a & 1) * 512))
        A(wait_lgkm(0), wait_vm_tag("K0"), barrier(), self.stamp())
        self.qrd = [ds_read("ds_read_b128", aQ(qb, ks), ra, (qb * 4 + ks) * 1024) for ks in range(4) for qb in range(5)]

    def colmax(self, dst, src8, tmp):
        o = [valu("v_max3_f32", dst, src8[0], src8[1], src8[2]), valu("v_max3_f32", dst, dst, src8[3], src8[4]), valu("v_max3_f32", dst, dst, src8[5], src8[6]), valu("v_max_f32", dst, dst, src8[7])]
        return o
    def xlane(self, op, regs, tmps):
        o = []
        for sw in ("v_permlane32_swap_b32", "v_permlane16_swap_b32"):
            o += [valu("v_mov_b32", t, r) for r, t in zip(regs, tmps)]
            o += [valu(sw, r, t) for r, t in zip(regs, tmps)]
            o += [valu(op, r, r, t) for r, t in zip(regs, tmps)]
        return o
    def softmax_list(self, a):
        Sx, Px = vS[a], vP[a]; o = []
        for e in range(41):
            if e < 40: o.append(valu("v_exp_f32", vE[e & 3], Sx[e]))
            p = e - 1
            if p >= 0:
                qb, j = divmod(p, 8)
                if j == 1: o.append(valu("v_add_f32", vBS[qb], vE[(p - 1) & 3], vE[p & 3]))
                elif j > 1: o.append(valu("v_add_f32", vBS[qb], vBS[qb], vE[p & 3]))
                if j & 1: o.append(valu("v_cvt_pk_bf16_f32", Px[4 * qb + (j >> 1)], vE[(p - 1) & 3], vE[p & 3]))
        x = self.P["x"]
        if "e" in x: o = [i for i in o if not i.txt.startswith("v_exp")]
        if "a" in x: o = [i for i in o if not i.txt.startswith("v_add")]
        if "c" in x: o = [i for i in o if not i.txt.startswith("v_cvt")]
        return o
    def slow_path(self, a):
        dl = [vTMP[i] for i in range(5)]; tm = [vTMP[5 + i] for i in range(5)]; ff = [vTMP[10 + i] for i in range(5)]
        o = [label(f"Lslow{a}"), nop(15)]
        for qb in range(5): o += self.colmax(dl[qb], vS[a].sub(8 * qb, 8), None)
        o += self.xlane("v_max_f32", dl, tm)
        for qb in range(5): o += [valu("v_max_f32", dl[qb], 0, dl[qb]), valu("v_exp_f32", ff[qb], Neg(dl[qb]))]
        for qb in range(5):
            for e in range(4): o.append(valu("v_sub_f32", vNM[4 * qb + e], vNM[4 * qb + e], dl[qb]))
            for e in range(8): o += [valu("v_sub_f32", vS[a][8 * qb + e], vS[a][8 * qb + e], dl[qb]), valu("v_sub_f32", vS[a ^ 1][8 * qb + e], vS[a ^ 1][8 * qb + e], dl[qb])]
            o.append(valu("v_mul_f32", vLs[qb], vLs[qb], ff[qb]))
        for j in range(8):
            for qb in range(5):
                for k in range(4): o.append(valu("v_accvgpr_read_b32", vE[k], aO(j, qb)[k]))
                for k in range(4): o.append(valu("v_mul_f32", vE[k], vE[k], ff[qb]))
                for k in range(4): o.append(valu("v_accvgpr_write_b32", aO(j, qb)[k], vE[k]))
        o += self.softmax_list(a)
        o += [nop(4), raw(f"s_setpc_b64 {sRET}", "branch")]
        return o

    def attention(self):
        A, P = self.A, self.P; x = P["x"]; plan = P["plan"]
        JORD = [4, 5, 6, 7, 0, 1, 2, 3]
        frags = []
        for n in range(-1, 17):
            if n + 1 <= 15: frags += [(n, f) for f in range(8)]
            if n - 1 >= 0: frags += [(n, f) for f in range(8, 16)]
        ring = {fr: aRING[i % 4] for i, fr in enumerate(frags)}
        slots = [(n, f, qb) for (n, f) in frags for qb in range(5)]
        gaps = {sl: [] for sl in slots}; pre = {sl: [] for sl in slots}; idx = {sl: k for k, sl in enumerate(slots)}
        def reads(fr):
            n, f = fr
            if f < 8:
                kb, ks = f >> 2, f & 3
                return [] if "k" in x else [ds_read("ds_read_b128", ring[fr], vKR[ks], KS[(n + 1) & 3] + kb * 4096)]
            j = JORD[f - 8]
            return [] if "v" in x else [ds_read("ds_read_b64_tr_b16", ring[fr].sub(2 * t, 2), vVR[j], VS[(n - 1) & 3] - VS[0] + t * 4096) for t in range(2)]
        def mf(sl):
            n, f, qb = sl
            if f < 8:
                b = n + 1; kb, ks = f >> 2, f & 3; d = vS[b & 1].sub(8 * qb + 4 * kb, 4)
                return mfma16(d, ring[(n, f)], aQ(qb, ks), d if ks else (0 if b == 0 else vNM.sub(4 * qb, 4)))
            b = n - 1; j = JORD[f - 8]; d = aO(j, qb)
            return mfma16(d, ring[(n, f)], vP[b & 1].sub(4 * qb, 4), 0 if b == 0 else d)
        head = []
        LA = 2
        for i, fr in enumerate(frags):
            n, f = fr
            first = (i == [k for k, z in enumerate(frags) if z[0] == n][0])
            if i < LA: tgt = [head, head]
            else:
                base = idx[frags[i - LA] + (0,)]
                tgt = [gaps[slots[base + 1]], gaps[slots[base + 3]]]
            if first and n >= 0:
                sy = [wait_lgkm(0)]
                if n + 1 <= 15: sy.append(wait_vm_tag(f"K{n+1}"))
                if n - 1 >= 0: sy.append(wait_vm_tag(f"V{n-1}"))
                sy += [barrier()] + (self.stamp() if n % (8 if P.get("qst") else 2) == 0 else [])
                tgt[0] += sy
                req = []
                if n == 0:
                    for nm in ("K1", "K2", "V0", "K3", "V1"):
                        if nm not in plan: req += self.kv_req(nm)
                    req += self.kv_req("K4") + self.kv_req("V2")
                elif n == 1: req += self.kv_req("K5") + self.kv_req("V3")
                else:
                    if n + 4 <= 15: req += self.kv_req(f"K{n+4}")
                    if n + 2 <= 15: req += self.kv_req(f"V{n+2}")
                if "d" in x and n >= 1: req = []
                if P["tail"]:
                    if n == 1: req += [self.flag_store(0)]
                    if n == 5: req += [[wait_vm_tag("flag"), valu("v_mov_b32", vT, 1)] + self.one_lane(vZ) + [salu("s_lshl_b32", sT, sB, 2),
                                       I(f"buffer_atomic_add {vT}, {vZ}, {sDBG}, {sT} offen", "vm_st", rd=regs_of(vT, vZ, sDBG, sT))]]
                    if n == 12: req += [[valu("v_mov_b32", vZ, 0), salu("s_lshl_b32", sT, sB, 2), buf_load("buffer_load_dword", vCNT, vZ, sDBG, sT, 0, "sc1")]]
                    if n == 13: req += self.wo_unit(0)
                    if n == 14: req += self.wo_unit(1) + self.wo_unit(2)
                sp = P.get("sp", 8) if 0 < n < 14 else (2 if n == 0 else 4)
                for q_, grp in enumerate(req): gaps[slots[base + 4 + sp * q_]] += grp
            rd = reads(fr)
            for k, r_ in enumerate(rd): tgt[k].append(r_)
        for n in range(0, 16):
            have = [sl for sl in slots if sl[0] == n]
            if n == 0:
                dl = [vTMP[i] for i in range(5)]; tm = [vTMP[5 + i] for i in range(5)]; o = []
                for qb in range(5): o += self.colmax(dl[qb], vS[0].sub(8 * qb, 8), None)
                o += self.xlane("v_max_f32", dl, tm)
                for qb in range(5):
                    for e in range(4): o.append(valu("v_sub_f32", vNM[4 * qb + e], 0, dl[qb]))
                for qb in range(5):
                    for e in range(8): o.append(valu("v_sub_f32", vS[0][8 * qb + e], vS[0][8 * qb + e], dl[qb]))
                pre[have[0]] += o
            sm = self.softmax_list(n & 1)
            ng = len(have) - 4
            cost = [2 if i.trans else 1 for i in sm]; tot = sum(cost); acc = 0
            for i_, c_ in zip(sm, cost):
                gaps[have[min(ng - 1, (acc * ng) // max(tot, 1))]].append(i_); acc += c_
            addl = [valu("v_add_f32", vLs[qb], vLs[qb], vBS[qb]) for qb in range(5)]
            if n > 0 and "b" not in x:
                gaps[have[-4]].append(valu("v_max3_f32", vT1, vBS[0], vBS[1], vBS[2]))
                gaps[have[-3]].append(valu("v_max3_f32", vT1, vT1, vBS[3], vBS[4]))
                gaps[have[-2]].append(valu("v_cmp_nge_f32", VCC, sTHR, vT1))
                gaps[have[-1]] += [raw(f"s_cbranch_vccnz Lstub{n}", "branch", rd=VCC.regs()), label(f"Lret{n}")]
                self.stubs += [label(f"Lstub{n}"), raw(f"s_call_b64 {sRET}, Lslow{n & 1}", "branch"), raw(f"s_branch Lret{n}", "branch")]
            gaps[have[-1]] += addl
        last = [sl for sl in slots if sl[0] == 16]
        wr, mlw, mlw2 = vTMP[15], vTMP[16], vTMP[17]
        ex = [salu("s_mul_i32", sT, sW, 20480), valu("v_add_u32", wr, sT, vL16), salu("s_mul_i32", sT, sW, 320), salu("s_add_u32", sT, sT, MLN), valu("v_and_b32", mlw, 15, vL), valu("v_lshl_add_u32", mlw, mlw, 2, sT), valu("v_add_u32", mlw2, MLL - MLN, mlw)]
        ex += self.xlane("v_add_f32", vLs, [vTMP[5 + i] for i in range(5)])
        ex += [ds_write("ds_write_b32", mlw, vNM[4 * qb], 64 * qb) for qb in range(5)] + [ds_write("ds_write_b32", mlw2, vLs[qb], 64 * qb) for qb in range(5)]
        for k, i_ in enumerate(ex): gaps[last[(k * 18) // len(ex)]].append(i_)
        tail = []
        for k in range(20):
            j, qb = 4 + k // 5, k % 5
            w_ = ds_write("ds_write_b128", wr, aO(j, qb), MX + k * 1024)
            pos = k + 10 if k < 10 else 20 + (k - 10) * 2
            gaps[last[max(pos, 19)]].append(w_)
        A(head[:0], self.qrd[:5], head, self.qrd[5:])
        for sl in slots:
            A(pre[sl], mf(sl) if "m" not in x else nop(2), gaps[sl])
        A(self.stamp())

    def epilogue(self):
        A, P = self.A, self.P
        rd, mlr = vTMP[10], vTMP[11]
        A(salu("s_xor_b32", sT2, sW, 2), salu("s_mul_i32", sT, sT2, 20480), valu("v_add_u32", rd, sT, vL16))
        A(salu("s_mul_i32", sT, sT2, 320), salu("s_add_u32", sT, sT, MLN), valu("v_and_b32", mlr, 15, vL), valu("v_lshl_add_u32", mlr, mlr, 2, sT), valu("v_add_u32", vTMP[12], MLL - MLN, mlr))
        A(wait_lgkm(0), barrier())
        nm = [vTMP[i] for i in range(5)]; ll = [vTMP[5 + i] for i in range(5)]
        for qb in range(5): A(ds_read("ds_read_b32", nm[qb], mlr, 64 * qb), ds_read("ds_read_b32", ll[qb], vTMP[12], 64 * qb))
        R = lambda j, qb: V(40 + 4 * (5 * j + qb), 4)
        order = [(ks, qb) for ks in range(2) for qb in range(5)]
        rdl = [ds_read("ds_read_b128", R(2 * ks + u, qb), rd, MX + ((2 * ks + u) * 5 + qb) * 1024) for (ks, qb) in order for u in range(2)]
        A(rdl[:4])
        so = [V(180 + 2 * qb, 2) for qb in range(5)]; sp = [V(190 + 2 * qb, 2) for qb in range(5)]
        for qb in range(5):
            A(valu("v_min_f32", vT1, nm[qb], vNM[4 * qb]), valu("v_sub_f32", so[qb][0], vT1, vNM[4 * qb]), valu("v_sub_f32", sp[qb][0], vT1, nm[qb]))
            A(valu("v_exp_f32", so[qb][0], so[qb][0]), valu("v_exp_f32", sp[qb][0], sp[qb][0]))
        A(rdl[4:12])
        for qb in range(5):
            A(valu("v_mul_f32", ll[qb], ll[qb], sp[qb][0]), valu("v_fmac_f32", ll[qb], vLs[qb], so[qb][0]), valu("v_rcp_f32", ll[qb], ll[qb]))
        for qb in range(5):
            A(valu("v_mul_f32", so[qb][0], so[qb][0], ll[qb]), valu("v_mul_f32", sp[qb][0], sp[qb][0], ll[qb]), valu("v_mov_b32", so[qb][1], so[qb][0]), valu("v_mov_b32", sp[qb][1], sp[qb][0]))
        A(rdl[12:])
        A(salu("s_lshl_b32", sT, sB, 5), salu("s_add_u32", sT, sT, sH), salu("s_lshl_b32", sT, sT, 1), salu("s_add_u32", sT, sT, sKG), salu("s_mul_i32", sT, sT, 20480))
        A(salu("s_mul_i32", sT2, sRG, 5120), salu("s_add_u32", sWQo, sT, sT2), salu("s_add_u32", sXo, sWQo, 10240), valu("v_add_u32", vT2, 4096, vL16))
        for k, (ks, qb) in enumerate(order):
            pk = vP[0].sub(4 * (k % 5), 4) if k < 5 else vP[1].sub(4 * (k % 5), 4)
            for u in range(2):
                j = 2 * ks + u; t = vU[u]
                A([valu("v_accvgpr_read_b32", t[e], aO(j, qb)[e]) for e in range(4)])
                A([valu("v_pk_mul_f32", R(j, qb).sub(2 * e, 2), R(j, qb).sub(2 * e, 2), sp[qb]) for e in range(2)])
                A([valu("v_pk_fma_f32", t.sub(2 * e, 2), t.sub(2 * e, 2), so[qb], R(j, qb).sub(2 * e, 2)) for e in range(2)])
                A([valu("v_cvt_pk_bf16_f32", pk[2 * u + e], t[2 * e], t[2 * e + 1]) for e in range(2)])
            A(buf_store("buffer_store_dwordx4", pk, vL16 if qb < 4 else vT2, sWS, sXo if ks else sWQo, 1024 * qb if qb < 4 else 0, P["opol"]))
        if P["tail"]: self.tail()
        if P["stamps"]:
            A(wait_vm(0), self.stamp(), raw("s_memtime s[96:97]"), raw("s_waitcnt lgkmcnt(0)", "wait"), salu("s_sub_u32", S(96), S(96), S(98)))
            A(salu("s_lshl_b32", sT, S(2), 2), salu("s_add_u32", sT, sT, sW), salu("s_lshl_b32", sT, sT, 7), salu("s_add_u32", sT, sT, STAMP_OFF), valu("v_mov_b32", vT, 0))
            for i in range(self.nst):
                A(valu("v_mov_b32", vT2, sST(i)), buf_store("buffer_store_dword", vT2, vT, sWS, sT, 4 * i))
            A(valu("v_mov_b32", vT2, S(96)), buf_store("buffer_store_dword", vT2, vT, sWS, sT, 4 * 31))
        A(label("L1_done"), raw("s_endpgm"))

    def tail(self):
        A, P = self.A, self.P
        g, r, cc, q, t, b0 = (vTMP[i] for i in range(6))
        A(valu("v_lshrrev_b32", g, 4, vL), valu("v_bfe_u32", r, vL, 2, 2), valu("v_and_b32", cc, 3, vL), valu("v_and_b32", q, 15, vL))
        A(valu("v_lshl_add_u32", b0, g, 2, r), valu("v_mul_u32_u24", b0, 160, b0), valu("v_lshl_add_u32", b0, cc, 3, b0))
        A(salu("s_mul_i32", sT, sKG, 26 * UNIT + 128), salu("s_mul_i32", sT2, sKG, 10 * UNIT + 128), salu("s_add_u32", sT2, sT2, 6 * UNIT))
        A(salu("s_mul_i32", sT3, sKG, -64), salu("s_add_u32", sT3, sT3, 32))
        A(valu("v_add_u32", vAR[0][0], sT, b0), valu("v_add_u32", vAR[1][0], sT2, b0))
        for aa in range(1, 5): A(valu("v_add_u32", vAR[0][aa], sT3, vAR[0][aa - 1]), valu("v_add_u32", vAR[1][aa], sT3, vAR[1][aa - 1]))
        A(salu("s_lshl_b32", sT, sKG, 12), salu("s_mul_i32", sT3, sKG, -2048), salu("s_add_u32", sT3, sT3, 1024), valu("v_add_u32", vBO[0], sT, vL16))
        for ii in range(1, 5): A(valu("v_add_u32", vBO[ii], sT3, vBO[ii - 1]))
        A(salu("s_lshl_b32", sT, sB, 5), salu("s_lshl_b32", sT2, sHG, 3), salu("s_add_u32", sT, sT, sT2), salu("s_lshl_b32", sT2, sKG, 2), salu("s_add_u32", sT, sT, sT2))
        A(salu("s_lshl_b32", sT, sT, 7), salu("s_add_u32", sKVo, sT, FL), valu("v_lshlrev_b32", t, 7, cc))
        A(wait_vm(0), barrier(), self.stamp(), self.flag_store(1))
        for i in range(3, 8): A(flat(self.wo_unit(i)))
        A(valu("v_cmp_ne_u32", VCC, 32, vCNT), raw("s_cbranch_vccz Lcnt_ok", "branch", rd=VCC.regs()))
        A(valu("v_mov_b32", vZ, 0), salu("s_lshl_b32", sT, sB, 2), self.poll("Lpoll0", sDBG, vZ, sT, 32, "v_cmp_ne_u32"), label("Lcnt_ok"))
        A(self.poll("Lpoll1", sWS, t, sKVo, 1, "v_cmp_gt_u32"), self.stamp())
        def breq(u):
            pre = []
            if u % 4 == 0:
                pre = [salu("s_add_u32", sT, sJ, u >> 2), salu("s_and_b32", sT, sT, 3), salu("s_lshl_b32", sT2, sKG, 2), salu("s_add_u32", sT, sT, sT2), salu("s_lshl_b32", sT2, sHG, 3), salu("s_add_u32", sT, sT, sT2),
                       salu("s_lshl_b32", sT2, sB, 5), salu("s_add_u32", sT, sT, sT2), salu("s_mul_i32", sT, sT, 40960), salu("s_mul_i32", sT2, sRG, 5120), salu("s_add_u32", sBo, sT, sT2)]
            else: pre = [salu("s_add_u32", sBo, sBo, 10240)]
            g_ = []
            for ii in range(5):
                g_.append(pre + [buf_load("buffer_load_dwordx4", gB(u, ii), vBO[ii], sWS, sBo, 0, "sc1")]); pre = []
            return g_
        for u in range(3): A(flat(breq(u)))
        frags = [(u, aa) for u in range(16) for aa in range(5)]
        ring = {fr: aRING[i % 4] for i, fr in enumerate(frags)}
        slots = [(u, aa, ii) for (u, aa) in frags for ii in range(5)]
        gaps = {sl: [] for sl in slots}; idx = {sl: k for k, sl in enumerate(slots)}
        head = []
        for i, (u, aa) in enumerate(frags):
            se = 0 if u < 6 else 1; off = (u if u < 6 else u - 6) * UNIT
            rd = [ds_read("ds_read_b64_tr_b16", ring[(u, aa)].sub(2 * tt, 2), vAR[se][aa], off + tt * 2560) for tt in range(2)]
            if i < 2: head += rd
            else:
                base = idx[frags[i - 2] + (0,)]
                if (u, aa) == (6, 0): gaps[slots[base + 1]] += [wait_lgkm(0), barrier()]
                gaps[slots[base + 1]].append(rd[0]); gaps[slots[base + 3]].append(rd[1])
        for u in range(13):
            for k, grp in enumerate(breq(u + 3)): gaps[slots[idx[(u, 0, 0)] + 5 * k + 2]] += grp
        A(head)
        for (u, aa, ii) in slots:
            d = gACC(5 * ii + aa)
            A(mfma16(d, ring[(u, aa)], gB(u, ii), 0 if u == 0 else d), gaps[(u, aa, ii)])
        A(self.stamp())
        wa, ra = vTMP[6], vTMP[7]
        def exc(dst, w_): return [salu("s_and_b32", sT, w_, 1), salu("s_mul_i32", sT, sT, 13312), salu("s_lshr_b32", sT2, w_, 1), salu("s_mul_i32", sT2, sT2, 26 * UNIT), salu("s_add_u32", sT, sT, sT2), valu("v_add_u32", dst, sT, vL16)]
        A(exc(wa, sW), salu("s_xor_b32", sT3, sW, 2), exc(ra, sT3))
        A(valu("v_lshrrev_b32", g, 4, vL), valu("v_and_b32", cc, 3, vL), valu("v_and_b32", q, 15, vL))
        for s_ in (15, 20, 16, 21, 12, 17, 22, 13, 18, 23, 14, 19, 24): A(ds_write("ds_write_b128", wa, gACC(s_), (s_ - 12) * 1024))
        A(salu("s_lshl_b32", sT, sB, 3), salu("s_add_u32", sT, sT, sJ), salu("s_mul_i32", sWQo, sT, 4 * 26624), salu("s_add_u32", sWQo, sWQo, PB))
        A(salu("s_mul_i32", sT, sHG, 26624), salu("s_add_u32", sXo, sWQo, sT), salu("s_lshl_b32", sT, sRG, 10), salu("s_add_u32", sT3, sXo, sT), salu("s_add_u32", sT3, sT3, 24576))
        A(salu("s_lshl_b32", sT, sKG, 30), valu("v_add_u32", vT3, sT, vL16))
        A(salu("s_mul_i32", sT, sRG, 12288), salu("s_mul_i32", sT2, sKG, 6144), salu("s_add_u32", sT, sT, sT2), salu("s_add_u32", sXo, sXo, sT), valu("v_add_u32", vT2, 4096, vL16))
        A(wait_lgkm(0), barrier())
        RR = lambda s_: V(140 + 4 * s_, 4)
        for s_ in range(13): A(ds_read("ds_read_b128", RR(s_), ra, (12 - s_) * 1024))
        for p in range(7):
            pk = V(192 + 4 * (p & 1), 4)
            for z in range(2 if p < 6 else 1):
                s_ = 2 * p + z
                A([valu("v_pk_add_f32", gACC(s_).sub(2 * e, 2), gACC(s_).sub(2 * e, 2), RR(s_).sub(2 * e, 2)) for e in range(2)])
                A([valu("v_cvt_pk_bf16_f32", pk[2 * z + e], gACC(s_)[2 * e], gACC(s_)[2 * e + 1]) for e in range(2)])
            if p < 6: A(buf_store("buffer_store_dwordx4", pk, vL16 if p < 4 else vT2, sWS, sXo, 1024 * (p & 3), "sc1"))
            else: A(buf_store("buffer_store_dwordx4", pk, vT3, sWS, sT3, 0, "sc1"))
        oa = [vTMP[8], vTMP[9]]; it, m_, i_ = vTMP[10], vTMP[11], vTMP[12]
        sIT = [sWQw, sM0x]
        for k in range(2):
            A(salu("s_lshl_b32", sT, sHG, 2), salu("s_add_u32", sT, sT, sW), salu("s_add_u32", sT, sT, 16 * k))
            A(salu("s_lshl_b32", sIT[k], sT, 10), salu("s_add_u32", sIT[k], sIT[k], sWQo))
            A(salu("s_mul_i32", sT3, sT, 43), salu("s_lshr_b32", sT3, sT3, 8), salu("s_mul_i32", sBo, sT3, 6), salu("s_sub_u32", sBo, sT, sBo), salu("s_lshr_b32", sT2, sT3, 1), salu("s_and_b32", sT3, sT3, 1))
            if k == 1:
                A(salu("s_cmp_ge_u32", None, sT, 24), salu("s_cselect_b32", sT2, sBo, sT2), salu("s_cselect_b32", sBo, 6, sBo))
            A(valu("v_and_b32", m_, 1, g), salu("s_lshl_b32", sBo, sBo, 1), valu("v_add_u32", m_, sBo, m_))
            if k == 1: A(valu("v_cmp_lt_u32", VCC, 12, m_))
            A(salu("s_mul_i32", sBo, sT3, 24), salu("s_mul_i32", sT3, sT3, -2), salu("s_add_u32", sT3, sT3, 1), valu("v_mul_i32_i24", m_, sT3, m_), valu("v_add_u32", m_, sBo, m_))
            A(valu("v_mul_u32_u24", i_, 52, m_), valu("v_lshrrev_b32", i_, 8, i_), valu("v_mul_u32_u24", it, 5, i_), valu("v_sub_u32", m_, m_, it))
            A(valu("v_lshl_add_u32", i_, i_, 4, q), salu("s_mul_i32", sT2, sT2, 80), salu("s_mul_i32", sBo, sB, 160), salu("s_add_u32", sT2, sT2, sBo), valu("v_add_u32", i_, sT2, i_))
            A(valu("v_mul_u32_u24", i_, 1280, i_), valu("v_lshl_add_u32", i_, m_, 5, i_), valu("v_lshrrev_b32", it, 1, g), valu("v_lshl_add_u32", i_, it, 4, i_), salu("s_mul_i32", sBo, sJ, 160), valu("v_add_u32", oa[k], sBo, i_))
            if k == 1:
                A(valu("v_mov_b32", it, 1 << 30), valu("v_cndmask_b32", oa[1], oa[1], it, VCC))
                A(salu("s_cmp_ge_u32", None, sT, 26), salu("s_cselect_b32", sT, 1 << 30, 0), valu("v_add_u32", vT4, sT, vL16), valu("v_add_u32", oa[1], sT, oa[1]))
        A(salu("s_lshl_b32", sT, sB, 5), salu("s_add_u32", sT, sT, sJ), salu("s_lshl_b32", sT, sT, 7), salu("s_add_u32", sKVo, sT, FL), valu("v_lshlrev_b32", t, 10, cc))
        A(wait_vm(0), barrier(), self.stamp(), self.flag_store(2))
        A(self.poll("Lpoll2", sWS, t, sKVo, 2, "v_cmp_gt_u32"), self.stamp())
        src = lambda k, h_: V(40 + 16 * k + 4 * h_, 4)
        for k in range(2):
            for h_ in range(4):
                A(buf_load("buffer_load_dwordx4", src(k, h_), vT4 if k else vL16, sWS, sIT[k], 0, "sc1"))
                if h_ < 3: A(salu("s_add_u32", sIT[k], sIT[k], 26624))
        A(salu("s_mov_b32", sT, "0xffff0000"))
        for k in range(2):
            acc = V(80 + 24 * k, 8); tmp = V(88 + 24 * k, 8); pk = V(96 + 24 * k, 4)
            for h_ in range(4):
                d = acc if h_ == 0 else tmp
                for e in range(4): A(valu("v_lshlrev_b32", d[2 * e], 16, src(k, h_)[e]), valu("v_and_b32", d[2 * e + 1], sT, src(k, h_)[e]))
                if h_: A([valu("v_pk_add_f32", acc.sub(2 * e, 2), acc.sub(2 * e, 2), tmp.sub(2 * e, 2)) for e in range(4)])
            A([valu("v_cvt_pk_bf16_f32", pk[e], acc[2 * e], acc[2 * e + 1]) for e in range(4)])
            A(valu("v_permlane16_swap_b32", pk[0], pk[2]), valu("v_permlane16_swap_b32", pk[1], pk[3]))
            A(buf_store("buffer_store_dwordx4", pk, oa[k], sOUT, 0, 0, P["outpol"]))

    def build(self):
        self.prologue(); self.qproj(); self.q_finish(); self.attention(); self.epilogue()
        out = finish(self.p, True)
        out += self.stubs
        if self.stubs:
            for a in range(2): out += finish(self.slow_path(a))
        return out

def main():
    P = dict(DEF)
    if len(sys.argv) > 2: P.update(json.loads(sys.argv[2]))
    out = sys.argv[1]
    hdr = open("standalone__gqa_block_cached__near_ridge.s.ref").read().split("; Override")[0] if P.get("hdr", 1) else ""
    s = hdr
    name = "standalone__gqa_block_cached__near_ridge_kernel"
    s += f"; @launch grid=(256,1,1) block=(256,1,1) lds={LDS1}\n"
    s += '.amdgcn_target "amdgcn-amd-amdhsa--gfx950"\n'
    s += kernel_header(name) + text(K1(P).build())
    s += kernel_desc(name, 512, 256)
    open(out, "w").write(s)

if __name__ == "__main__":
    main()
```

```python
import sys, json, math, struct
from asmlib import *

def fbits(x): return "0x%08x" % struct.unpack("<I", struct.pack("<f", x))[0]
K_ = 1024
DEF = dict(kvpol="nt", qpol="", stamps=0, rot=1, opol="sc1", wpol="", outpol="", tail=1, thr=65536.0, x="",
           plan={"K0": 6, "K1": 7, "K2": 8, "V0": 8, "K3": 9})

KS = [16 * K_ * i for i in range(4)]
VS = [64 * K_ + 16 * K_ * i for i in range(4)]
STG = {1: 52 * K_, 2: 88 * K_, 0: 124 * K_}
QX = 84 * K_
MX = 32 * K_
MLN = 30720
MLL = 131072
UNIT = 5120
EXC = [0, 13312, 26 * UNIT, 26 * UNIT + 13312]
PB = 20 << 20
FL = 28 << 20
LDS1 = 163840
STAMP_OFF = 16 << 20

sX, sWQ, sK, sV, sWS = S(20, 4), S(24, 4), S(28, 4), S(32, 4), S(36, 4)
sB, sH, sW, sROT = S(40), S(41), S(42), S(43)
sWQo, sXo, sKVo, sW4K, sT, sTHR, sT2, sT3 = S(44), S(45), S(46), S(47), S(48), S(49), S(50), S(51)
sRET = S(52, 2); sC2 = S(54, 2); sWQw, sM0x, sRG, sKG = S(56), S(57), S(58), S(59)
sST = lambda i: S(60 + i)
sSTT = S(96, 2)
vTID, vL, vL16, vT = V(0), V(1), V(2), V(3)
vKD = [V(4 + j) for j in range(4)]; vVD = [V(8), V(9)]
vKR = [V(10 + j) for j in range(4)]; vVR = [V(14 + j) for j in range(8)]
vLs = [V(22 + j) for j in range(5)]; vBS = [V(27 + j) for j in range(5)]
vE = [V(32 + j) for j in range(4)]; vT1, vT2, vT3, vT4 = V(36), V(37), V(38), V(39)
vS = [V(40, 40), V(80, 40)]; vP = [V(120, 20), V(140, 20)]; vNM = V(160, 20)
vACC = lambda a, qb: V(40 + 4 * (5 * a + qb), 4)
vWD = [V(180 + j) for j in range(4)]; vXD = [V(184 + j) for j in range(5)]
vQA = [[V(190 + j) for j in range(4)], [V(196 + j) for j in range(4)]]
vQB = [[V(194), V(195)], [V(200), V(201)]]
vTMP = V(204, 20)
vWO = [V(224 + j) for j in range(5)]; vCNT = V(229)
vAR = [[V(230 + j) for j in range(5)], [V(235 + j) for j in range(5)]]; vBO = [V(240 + j) for j in range(5)]
vU = [V(246, 4), V(250, 4)]; vZ = V(254)
sWO, sDBG, sOUT = S(80, 4), S(84, 4), S(88, 4)
sJ, sHG, sSPIN, sBo = S(92), S(93), S(94), S(95)
gACC = lambda s_: V(40 + 4 * s_, 4)
gB = lambda u, ii: V(140 + 20 * (u & 3) + 4 * ii, 4)
aO = lambda j, qb: Ac(4 * (5 * j + qb), 4)
aRING = [Ac(160 + 4 * i, 4) for i in range(4)]
aQ = lambda qb, ks: Ac(176 + 4 * (4 * qb + ks), 4)
aFA = lambda p, a: Ac(36 * p + 4 * a, 4)
aFB = lambda p, qb: Ac(36 * p + 16 + 4 * qb, 4)
flat = lambda g: [i for x in g for i in x]

class K1:
    def __init__(self, P):
        self.P = P; self.p = []; self.nst = 0; self.stubs = []
    def A(self, *x):
        for i in x:
            if isinstance(i, list): self.p += i
            else: self.p.append(i)
    def stamp(self):
        if self.P["stamps"]:
            i = self.nst; self.nst += 1
            op = 's_memrealtime' if self.P['stamps'] == 1 else 's_memtime'
            return [raw(f"{op} {sSTT} ; stamp"), raw("s_waitcnt lgkmcnt(0)", "wait_lg0"), salu("s_mov_b32", sST(i), sSTT[0])]
        return []

    def prologue(self):
        A, P = self.A, self.P
        A(raw("s_cmp_ge_u32 s2, 256"), raw("s_cbranch_scc1 L1_done", "branch"))
        A(self.stamp())
        if P["stamps"]: A(raw("s_memtime s[98:99]"))
        A(raw("s_load_dwordx8 s[4:11], s[0:1], 0"), raw("s_load_dwordx8 s[12:19], s[0:1], 32"))
        A(valu("v_lshrrev_b32", vT, 6, vTID), valu("v_and_b32", vL, 63, vTID), valu("v_readfirstlane_b32", sW, vT))
        A(salu("s_and_b32", sB, S(2), 1), salu("s_lshl_b32", sB, sB, 2), salu("s_lshr_b32", sT, S(2), 6), salu("s_add_u32", sB, sB, sT))
        A(salu("s_lshr_b32", sH, S(2), 1), salu("s_and_b32", sH, sH, 3), salu("s_lshl_b32", sH, sH, 3), salu("s_lshr_b32", sT, S(2), 3), salu("s_and_b32", sT, sT, 7), salu("s_add_u32", sH, sH, sT))
        if P["rot"]:
            A(salu("s_and_b32", sT, sB, 3), salu("s_and_b32", sT2, sH, 7), salu("s_mul_i32", sT, sT, 10), salu("s_mul_i32", sT2, sT2, 5),
              salu("s_add_u32", sROT, sT, sT2), salu("s_lshr_b32", sROT, sROT, 2), salu("s_cmp_ge_u32", None, sROT, 10),
              salu("s_cselect_b32", sT, 10, 0), salu("s_sub_u32", sROT, sROT, sT))
        else:
            A(salu("s_mov_b32", sROT, 0))
        A(salu("s_lshl_b32", sW4K, sW, 12), salu("s_lshl_b32", sWQw, sW, 17), salu("s_mul_i32", sM0x, sW, 5120))
        row4, c16 = vT1, vT2
        A(valu("v_lshrrev_b32", row4, 4, vL), valu("v_and_b32", c16, 15, vL))
        A(valu("v_lshlrev_b32", vT, 1, row4), valu("v_xor_b32", vT, vT, c16), valu("v_lshlrev_b32", vT, 4, vT))
        A(valu("v_lshl_add_u32", vWD[0], row4, 13, vT), valu("v_lshl_add_u32", vVD[0], row4, 8, vT))
        A(valu("v_add_u32", vWD[1], 32768 - 1024, vWD[0]), valu("v_xor_b32", vWD[2], 128, vWD[0]))
        A(valu("v_add_u32", vWD[3], 3 * (32768 - 1024), vWD[2]), valu("v_add_u32", vWD[2], 2 * (32768 - 1024), vWD[2]))
        row8, c8 = vT3, vT4
        A(valu("v_lshrrev_b32", row8, 3, vL), valu("v_and_b32", c8, 7, vL), salu("s_and_b32", sRG, sW, 1), salu("s_lshl_b32", sT2, sRG, 6), salu("s_mul_i32", sT, sW, 5 * 8 * 1280))
        A(valu("v_lshrrev_b32", vT, 1, row8), valu("v_xor_b32", vT, vT, c8), valu("v_lshlrev_b32", vT, 4, vT), valu("v_xor_b32", vT, sT2, vT))
        A(valu("v_mul_u32_u24", row8, 1280, row8), valu("v_add_u32", row8, sT, row8), valu("v_add_u32", vXD[0], row8, vT), valu("v_xor_b32", vT, 64, vT), valu("v_add_u32", vXD[1], row8, vT))
        A(valu("v_add_u32", vXD[2], 2 * (10240 - 1024), vXD[0]), valu("v_add_u32", vXD[3], 3 * (10240 - 1024), vXD[1]), valu("v_add_u32", vXD[4], 4 * 10240, vXD[0]), valu("v_add_u32", vXD[1], 10240 - 1024, vXD[1]))
        A(raw("s_waitcnt lgkmcnt(0)", "wait"))
        A(salu("s_lshl_b32", sT, sH, 8), salu("s_add_u32", sWQ[0], S(10), sT), salu("s_addc_u32", sWQ[1], S(11), 0), salu("s_sub_u32", sWQ[2], 5242880, sT), salu("s_mov_b32", sWQ[3], "0x20000"))
        A(salu("s_mul_i32", sT, sB, 204800), salu("s_add_u32", sX[0], S(4), sT), salu("s_addc_u32", sX[1], S(5), 0), salu("s_mov_b32", sX[2], 204800), salu("s_mov_b32", sX[3], "0x20000"))
        A(flat(self.chunk_dma(0)))
        A(salu("s_lshl_b32", sT, sB, 5), salu("s_add_u32", sT, sT, sH), salu("s_lshl_b32", sT, sT, 18))
        if P.get("hot"): A(salu("s_mov_b32", sT, 0))
        A(salu("s_add_u32", sK[0], S(6), sT), salu("s_addc_u32", sK[1], S(7), 0), salu("s_mov_b32", sK[2], 262144), salu("s_mov_b32", sK[3], "0x20000"))
        A(salu("s_add_u32", sV[0], S(8), sT), salu("s_addc_u32", sV[1], S(9), 0), salu("s_mov_b32", sV[2], 262144), salu("s_mov_b32", sV[3], "0x20000"))
        A(salu("s_mov_b32", sWS[0], S(18)), salu("s_mov_b32", sWS[1], S(19)), salu("s_mov_b32", sWS[2], 32 << 20), salu("s_mov_b32", sWS[3], "0x20000"))
        A(salu("s_mov_b32", sTHR, fbits(P["thr"])), salu("s_lshr_b32", sKG, sW, 1))
        c = fbits(math.log2(math.e) / math.sqrt(128.0))
        A(salu("s_mov_b32", sC2[0], c), salu("s_mov_b32", sC2[1], c))
        A(valu("v_xor_b32", vVD[1], 128, vVD[0]), valu("v_lshlrev_b32", vL16, 4, vL))
        for j in range(4):
            A(valu("v_add_u32", vT, 4 * j, row4), valu("v_xor_b32", vT, vT, c16), valu("v_lshlrev_b32", vT, 4, vT), valu("v_lshl_add_u32", vKD[j], row4, 8, vT))
        g, r, cc, q, t, f, b0 = (vTMP[i] for i in range(7))
        A(valu("v_lshrrev_b32", g, 4, vL), valu("v_bfe_u32", r, vL, 2, 2), valu("v_and_b32", cc, 3, vL), valu("v_and_b32", q, 15, vL))
        A(valu("v_and_b32", f, 1, g), valu("v_lshl_add_u32", f, f, 2, r))
        A(valu("v_lshl_add_u32", b0, g, 3, r), valu("v_lshlrev_b32", b0, 8, b0), valu("v_lshl_add_u32", b0, cc, 3, b0))
        A(salu("s_lshl_b32", sT, sKG, 2), valu("v_xor_b32", t, sT, f), valu("v_lshl_add_u32", b0, t, 5, b0))
        for a in range(4):
            A(valu("v_xor_b32", t, 32 * a, b0), valu("v_add_u32", vQA[0][a], STG[1], t), valu("v_add_u32", vQA[1][a], STG[0], t))
        A(valu("v_lshrrev_b32", t, 1, q), valu("v_xor_b32", t, t, g), valu("v_lshlrev_b32", t, 4, t), valu("v_lshl_add_u32", b0, q, 7, t))
        A(salu("s_mul_i32", sT, sRG, 10240), salu("s_add_u32", sT2, sT, STG[1] + 16384), salu("s_add_u32", sT3, sT, STG[0] + 16384))
        A(valu("v_xor_b32", t, 64, b0), valu("v_add_u32", vQB[0][0], sT2, b0), valu("v_add_u32", vQB[0][1], sT2, t), valu("v_add_u32", vQB[1][0], sT3, b0), valu("v_add_u32", vQB[1][1], sT3, t))
        A(flat(self.chunk_dma(1)))
        A(salu("s_lshl_b32", sT, sKG, 13))
        A(valu("v_xor_b32", t, q, g), valu("v_lshlrev_b32", t, 4, t), valu("v_lshl_add_u32", b0, q, 8, t), valu("v_add_u32", b0, sT, b0))
        for ks in range(4): A(valu("v_xor_b32", vKR[ks], 64 * ks, b0))
        A(valu("v_lshl_add_u32", b0, g, 2, r), valu("v_lshlrev_b32", b0, 8, b0), valu("v_lshl_add_u32", b0, cc, 3, b0), salu("s_add_u32", sT, sT, VS[0]), valu("v_add_u32", b0, sT, b0))
        A(salu("s_lshl_b32", sT, sKG, 2), valu("v_xor_b32", t, sT, f), valu("v_lshl_add_u32", b0, t, 5, b0))
        for j in range(8): A(valu("v_xor_b32", vVR[j], 32 * j, b0))
        for qb in range(5): A(valu("v_mov_b32", vLs[qb], 0))
        if P["tail"]:
            A(salu("s_and_b32", sJ, sH, 7), salu("s_lshr_b32", sHG, sH, 3))
            A(salu("s_mul_i32", sT, sJ, 160), salu("s_add_u32", sWO[0], S(12), sT), salu("s_addc_u32", sWO[1], S(13), 0), salu("s_sub_u32", sWO[2], 5242880, sT), salu("s_mov_b32", sWO[3], "0x20000"))
            A(salu("s_mov_b32", sDBG[0], S(16)), salu("s_mov_b32", sDBG[1], S(17)), salu("s_mov_b32", sDBG[2], 256), salu("s_mov_b32", sDBG[3], "0x20000"))
            A(salu("s_mov_b32", sOUT[0], S(14)), salu("s_mov_b32", sOUT[1], S(15)), salu("s_mov_b32", sOUT[2], 1638400), salu("s_mov_b32", sOUT[3], "0x20000"))
            for m in range(5):
                A(valu("v_add_u32", t, 64 * m, vL), valu("v_mul_u32_u24", b0, 6554, t), valu("v_lshrrev_b32", b0, 16, b0), valu("v_mul_u32_u24", vZ, 1280 - 160, b0))
                A(valu("v_lshl_add_u32", vWO[m], t, 4, vZ))
                if 0 < m < 4: A(valu("v_subrev_u32", vWO[m], 1024 * m, vWO[m]))

    def one_lane(self, dst):
        return [valu("v_min_u32", dst, 1, vTID), valu("v_lshlrev_b32", dst, 30, dst)]
    def flag_store(self, val):
        o = self.one_lane(vZ) + [valu("v_mov_b32", vT, val), salu("s_lshl_b32", sT, sB, 5), salu("s_add_u32", sT, sT, sH), salu("s_lshl_b32", sT, sT, 7), salu("s_add_u32", sT, sT, FL)]
        return o + [buf_store("buffer_store_dword", vT, vZ, sWS, sT, 0, "sc1", "flag")]
    def wo_unit(self, i):
        pol = self.P["wpol"]; g = []
        pre = [salu("s_add_u32", sT2, sRG, 2 * i), salu("s_lshr_b32", sT3, sT2, 2), salu("s_add_u32", sT3, sT3, sJ), salu("s_and_b32", sT3, sT3, 3), salu("s_lshl_b32", sT3, sT3, 2),
               salu("s_and_b32", sBo, sT2, 3), salu("s_add_u32", sT3, sT3, sBo), salu("s_lshl_b32", sBo, sKG, 4), salu("s_add_u32", sT3, sT3, sBo), salu("s_lshl_b32", sBo, sHG, 5),
               salu("s_add_u32", sT3, sT3, sBo), salu("s_mul_i32", sBo, sT3, 32 * 1280),
               salu("s_mul_i32", sT3, sKG, 26 if i < 3 else 10), salu("s_add_u32", sT2, sT2, sT3), salu("s_mul_i32", sT2, sT2, UNIT), salu("s_mov_b32", M0, sT2)]
        for m in range(5):
            if m == 4: pre = [salu("s_add_u32", M0, sT2, 4096), nop(0)]
            g.append(pre + [buf_dma(vWO[m], sWO, sBo, 1024 * m if m < 4 else 0, pol, "wo")]); pre = []
        return g
    def poll(self, name, srd, addr, soff, val, cmp):
        return [salu("s_mov_b32", sSPIN, 1 << 18), label(name), buf_load("buffer_load_dword", vT1, addr, srd, soff, 0, "sc1"), raw("s_waitcnt vmcnt(0)", "wait_vm0"),
                salu("s_sub_u32", sSPIN, sSPIN, 1), valu(cmp, VCC, val, vT1), raw(f"s_cbranch_scc1 {name}_x", "branch"), raw(f"s_cbranch_vccnz {name}", "branch", rd=VCC.regs()), label(name + "_x")]
    def chunk_dma(self, c):
        pol = self.P["qpol"]; base = STG[c % 3]; tag = ("c", c); g = []
        pre = [salu("s_lshl_b32", sWQo, sROT, 19), salu("s_add_u32", M0, sW4K, base), salu("s_add_u32", sWQo, sWQo, sWQw)]
        imm = [0, 1024, 2048, 3072]
        for j in range(4):
            g.append((pre if j == 0 else []) + [buf_dma(vWD[j], sWQ, sWQo, imm[j], pol, tag)])
        for j in range(5):
            pre = []
            if j == 0: pre = [salu("s_add_u32", M0, sM0x, base + 16384), salu("s_lshl_b32", sXo, sROT, 7)]
            if j == 4: pre = [salu("s_add_u32", M0, sM0x, base + 16384 + 4096), salu("s_add_u32", sROT, sROT, 1), salu("s_cmp_eq_u32", None, sROT, 10), salu("s_cselect_b32", sROT, 0, sROT)]
            g.append(pre + [buf_dma(vXD[j], sX, sXo, 1024 * j if j < 4 else 0, pol, tag)])
        return g
    def kv_req(self, name):
        kv, n = name[0], int(name[1:]); pol = self.P["kvpol"]; g = []
        srd = sK if kv == "K" else sV; slot = (KS if kv == "K" else VS)[n & 3]
        for j in range(4):
            voff = vKD[j] if kv == "K" else vVD[j & 1]
            pre = [salu("s_add_u32", M0, sW4K, slot), salu("s_add_u32", sKVo, sW4K, n * 16384)] if j == 0 else []
            g.append(pre + [buf_dma(voff, srd, sKVo, 1024 * j, pol, name)])
        return g

    def q_reads(self, c, s):
        st = STG[c % 3]; se = 1 if st == STG[0] else 0; rel = st - (STG[0] if se else STG[1]); p = s & 1
        rA = lambda a, t: ds_read("ds_read_b64_tr_b16", aFA(p, a).sub(2 * t, 2), vQA[se][a], rel + (32 * s + 4 * t) * 256)
        rB = lambda qb: ds_read("ds_read_b128", aFB(p, qb), vQB[se][s], rel + qb * 2048)
        return [rB(0), rA(0, 0), rA(0, 1), rB(1), rB(2), rB(3), rB(4), rA(1, 0), rA(1, 1), rA(2, 0), rA(2, 1), rA(3, 0), rA(3, 1)]
    def qproj(self):
        A, P = self.A, self.P; plan = P["plan"]
        A(flat([flat(self.kv_req(n)) for n in ("K0", "K1", "K2") if plan.get(n) == "pro"]))
        A(wait_vm_tag(("c", 0)), barrier(), self.stamp(), self.q_reads(0, 0))

        slots = [(c, s, i) for c in range(10) for s in range(2) for i in range(20)]
        gaps = {sl: [] for sl in slots}; idx = {sl: k for k, sl in enumerate(slots)}
        nxt = [0]
        def place(groups, start, step):
            k = max(start, nxt[0])
            for grp in groups:
                gaps[slots[min(k, len(slots) - 1)]] += grp; k += step
            nxt[0] = k
        for c in range(10):
            rd = self.q_reads(c, 1)
            for k, r_ in enumerate(rd): gaps[(c, 0, (k * 3) // 2)].append(r_)
            if c < 9:
                rd = self.q_reads(c + 1, 0)
                gaps[(c, 1, 5)] += [wait_lgkm(0), wait_vm_tag(("c", c + 1)), barrier()] + (self.stamp() if P.get("qst") else [])
                for k, r_ in enumerate(rd): gaps[(c, 1, 5 + k)].append(r_)
        place(self.chunk_dma(2), 1, 2)
        for c in range(10):
            for n in ("K0", "K1", "K2", "V0", "K3"):
                if plan.get(n) == c: place(self.kv_req(n), idx[(c, 0, 0)], 2)
            if c + 3 < 10: place(self.chunk_dma(c + 3), idx[(c, 1, 7)], P.get("qsp", 3))
        for (c, s, i) in slots:
            a, qb = divmod(i, 5); p = s
            m = mfma16(vACC(a, qb), aFA(p, a), aFB(p, qb), 0 if (c == 0 and s == 0) else vACC(a, qb))
            A(m, gaps[(c, s, i)])
    def q_finish(self):
        A, P = self.A, self.P
        g, q, t, wa, ra = vTMP[0], vTMP[3], vTMP[4], vTMP[8], vTMP[9]
        A(salu("s_mul_i32", sT, sRG, 20480), salu("s_add_u32", sT, sT, QX), valu("v_add_u32", ra, sT, vL16), salu("s_lshl_b32", sT2, sKG, 11), salu("s_add_u32", sT, sT, sT2))
        A(valu("v_lshrrev_b32", t, 1, g), valu("v_lshlrev_b32", wa, 8, t), valu("v_lshl_add_u32", wa, q, 4, wa), valu("v_and_b32", t, 1, g), valu("v_lshl_add_u32", wa, t, 3, wa), valu("v_add_u32", wa, sT, wa))
        k = 0
        for a in range(4):
            for qb in range(5):
                acc = vACC(a, qb); d = vTMP.sub(12 + 2 * (k % 4), 2); k += 1
                A(valu("v_pk_mul_f32", acc.sub(0, 2), acc.sub(0, 2), sC2), valu("v_pk_mul_f32", acc.sub(2, 2), acc.sub(2, 2), sC2))
                A(valu("v_cvt_pk_bf16_f32", d[0], acc[0], acc[1]), valu("v_cvt_pk_bf16_f32", d[1], acc[2], acc[3]))
                A(ds_write("ds_write_b64", wa, d, qb * 4096 + (a >> 1) * 1024 + (a & 1) * 512))
        A(wait_lgkm(0), wait_vm_tag("K0"), barrier(), self.stamp())
        self.qrd = [ds_read("ds_read_b128", aQ(qb, ks), ra, (qb * 4 + ks) * 1024) for ks in range(4) for qb in range(5)]

    def colmax(self, dst, src8, tmp):
        o = [valu("v_max3_f32", dst, src8[0], src8[1], src8[2]), valu("v_max3_f32", dst, dst, src8[3], src8[4]), valu("v_max3_f32", dst, dst, src8[5], src8[6]), valu("v_max_f32", dst, dst, src8[7])]
        return o
    def xlane(self, op, regs, tmps):
        o = []
        for sw in ("v_permlane32_swap_b32", "v_permlane16_swap_b32"):
            o += [valu("v_mov_b32", t, r) for r, t in zip(regs, tmps)]
            o += [valu(sw, r, t) for r, t in zip(regs, tmps)]
            o += [valu(op, r, r, t) for r, t in zip(regs, tmps)]
        return o
    def softmax_list(self, a):
        Sx, Px = vS[a], vP[a]; o = []
        for e in range(41):
            if e < 40: o.append(valu("v_exp_f32", vE[e & 3], Sx[e]))
            p = e - 1
            if p >= 0:
                qb, j = divmod(p, 8)
                if j == 1: o.append(valu("v_add_f32", vBS[qb], vE[(p - 1) & 3], vE[p & 3]))
                elif j > 1: o.append(valu("v_add_f32", vBS[qb], vBS[qb], vE[p & 3]))
                if j & 1: o.append(valu("v_cvt_pk_bf16_f32", Px[4 * qb + (j >> 1)], vE[(p - 1) & 3], vE[p & 3]))
        x = self.P["x"]
        if "e" in x: o = [i for i in o if not i.txt.startswith("v_exp")]
        if "a" in x: o = [i for i in o if not i.txt.startswith("v_add")]
        if "c" in x: o = [i for i in o if not i.txt.startswith("v_cvt")]
        return o
    def slow_path(self, a):
        dl = [vTMP[i] for i in range(5)]; tm = [vTMP[5 + i] for i in range(5)]; ff = [vTMP[10 + i] for i in range(5)]
        o = [label(f"Lslow{a}"), nop(15)]
        for qb in range(5): o += self.colmax(dl[qb], vS[a].sub(8 * qb, 8), None)
        o += self.xlane("v_max_f32", dl, tm)
        for qb in range(5): o += [valu("v_max_f32", dl[qb], 0, dl[qb]), valu("v_exp_f32", ff[qb], Neg(dl[qb]))]
        for qb in range(5):
            for e in range(4): o.append(valu("v_sub_f32", vNM[4 * qb + e], vNM[4 * qb + e], dl[qb]))
            for e in range(8): o += [valu("v_sub_f32", vS[a][8 * qb + e], vS[a][8 * qb + e], dl[qb]), valu("v_sub_f32", vS[a ^ 1][8 * qb + e], vS[a ^ 1][8 * qb + e], dl[qb])]
            o.append(valu("v_mul_f32", vLs[qb], vLs[qb], ff[qb]))
        for j in range(8):
            for qb in range(5):
                for k in range(4): o.append(valu("v_accvgpr_read_b32", vE[k], aO(j, qb)[k]))
                for k in range(4): o.append(valu("v_mul_f32", vE[k], vE[k], ff[qb]))
                for k in range(4): o.append(valu("v_accvgpr_write_b32", aO(j, qb)[k], vE[k]))
        o += self.softmax_list(a)
        o += [nop(4), raw(f"s_setpc_b64 {sRET}", "branch")]
        return o

    def attention(self):
        A, P = self.A, self.P; x = P["x"]; plan = P["plan"]
        JORD = [4, 5, 6, 7, 0, 1, 2, 3]
        frags = []
        for n in range(-1, 17):
            if n + 1 <= 15: frags += [(n, f) for f in range(8)]
            if n - 1 >= 0: frags += [(n, f) for f in range(8, 16)]
        ring = {fr: aRING[i % 4] for i, fr in enumerate(frags)}
        slots = [(n, f, qb) for (n, f) in frags for qb in range(5)]
        gaps = {sl: [] for sl in slots}; pre = {sl: [] for sl in slots}; idx = {sl: k for k, sl in enumerate(slots)}
        def reads(fr):
            n, f = fr
            if f < 8:
                kb, ks = f >> 2, f & 3
                return [] if "k" in x else [ds_read("ds_read_b128", ring[fr], vKR[ks], KS[(n + 1) & 3] + kb * 4096)]
            j = JORD[f - 8]
            return [] if "v" in x else [ds_read("ds_read_b64_tr_b16", ring[fr].sub(2 * t, 2), vVR[j], VS[(n - 1) & 3] - VS[0] + t * 4096) for t in range(2)]
        def mf(sl):
            n, f, qb = sl
            if f < 8:
                b = n + 1; kb, ks = f >> 2, f & 3; d = vS[b & 1].sub(8 * qb + 4 * kb, 4)
                return mfma16(d, ring[(n, f)], aQ(qb, ks), d if ks else (0 if b == 0 else vNM.sub(4 * qb, 4)))
            b = n - 1; j = JORD[f - 8]; d = aO(j, qb)
            return mfma16(d, ring[(n, f)], vP[b & 1].sub(4 * qb, 4), 0 if b == 0 else d)
        head = []
        LA = 2
        for i, fr in enumerate(frags):
            n, f = fr
            first = (i == [k for k, z in enumerate(frags) if z[0] == n][0])
            if i < LA: tgt = [head, head]
            else:
                base = idx[frags[i - LA] + (0,)]
                tgt = [gaps[slots[base + 1]], gaps[slots[base + 3]]]
            if first and n >= 0:
                sy = [wait_lgkm(0)]
                if n + 1 <= 15: sy.append(wait_vm_tag(f"K{n+1}"))
                if n - 1 >= 0: sy.append(wait_vm_tag(f"V{n-1}"))
                sy += [barrier()] + (self.stamp() if n % (8 if P.get("qst") else 2) == 0 else [])
                tgt[0] += sy
                req = []
                if n == 0:
                    for nm in ("K1", "K2", "V0", "K3", "V1"):
                        if nm not in plan: req += self.kv_req(nm)
                    req += self.kv_req("K4") + self.kv_req("V2")
                elif n == 1: req += self.kv_req("K5") + self.kv_req("V3")
                else:
                    if n + 4 <= 15: req += self.kv_req(f"K{n+4}")
                    if n + 2 <= 15: req += self.kv_req(f"V{n+2}")
                if "d" in x and n >= 1: req = []
                if P["tail"]:
                    if n == 1: req += [self.flag_store(0)]
                    if n == 5: req += [[wait_vm_tag("flag"), valu("v_mov_b32", vT, 1)] + self.one_lane(vZ) + [salu("s_lshl_b32", sT, sB, 2),
                                       I(f"buffer_atomic_add {vT}, {vZ}, {sDBG}, {sT} offen", "vm_st", rd=regs_of(vT, vZ, sDBG, sT))]]
                    if n == 12: req += [[valu("v_mov_b32", vZ, 0), salu("s_lshl_b32", sT, sB, 2), buf_load("buffer_load_dword", vCNT, vZ, sDBG, sT, 0, "sc1")]]
                    if n == 13: req += self.wo_unit(0)
                    if n == 14: req += self.wo_unit(1) + self.wo_unit(2)
                sp = P.get("sp", 8) if 0 < n < 14 else (2 if n == 0 else 4)
                for q_, grp in enumerate(req): gaps[slots[base + 4 + sp * q_]] += grp
            rd = reads(fr)
            for k, r_ in enumerate(rd): tgt[k].append(r_)
        for n in range(0, 16):
            have = [sl for sl in slots if sl[0] == n]
            if n == 0:
                dl = [vTMP[i] for i in range(5)]; tm = [vTMP[5 + i] for i in range(5)]; o = []
                for qb in range(5): o += self.colmax(dl[qb], vS[0].sub(8 * qb, 8), None)
                o += self.xlane("v_max_f32", dl, tm)
                for qb in range(5):
                    for e in range(4): o.append(valu("v_sub_f32", vNM[4 * qb + e], 0, dl[qb]))
                for qb in range(5):
                    for e in range(8): o.append(valu("v_sub_f32", vS[0][8 * qb + e], vS[0][8 * qb + e], dl[qb]))
                pre[have[0]] += o
            sm = self.softmax_list(n & 1)
            ng = len(have) - 4
            cost = [2 if i.trans else 1 for i in sm]; tot = sum(cost); acc = 0
            for i_, c_ in zip(sm, cost):
                gaps[have[min(ng - 1, (acc * ng) // max(tot, 1))]].append(i_); acc += c_
            addl = [valu("v_add_f32", vLs[qb], vLs[qb], vBS[qb]) for qb in range(5)]
            if n > 0 and "b" not in x:
                gaps[have[-4]].append(valu("v_max3_f32", vT1, vBS[0], vBS[1], vBS[2]))
                gaps[have[-3]].append(valu("v_max3_f32", vT1, vT1, vBS[3], vBS[4]))
                gaps[have[-2]].append(valu("v_cmp_nge_f32", VCC, sTHR, vT1))
                gaps[have[-1]] += [raw(f"s_cbranch_vccnz Lstub{n}", "branch", rd=VCC.regs()), label(f"Lret{n}")]
                self.stubs += [label(f"Lstub{n}"), raw(f"s_call_b64 {sRET}, Lslow{n & 1}", "branch"), raw(f"s_branch Lret{n}", "branch")]
            gaps[have[-1]] += addl
        last = [sl for sl in slots if sl[0] == 16]
        wr, mlw, mlw2 = vTMP[15], vTMP[16], vTMP[17]
        ex = [salu("s_mul_i32", sT, sW, 20480), valu("v_add_u32", wr, sT, vL16), salu("s_mul_i32", sT, sW, 320), salu("s_add_u32", sT, sT, MLN), valu("v_and_b32", mlw, 15, vL), valu("v_lshl_add_u32", mlw, mlw, 2, sT), valu("v_add_u32", mlw2, MLL - MLN, mlw)]
        ex += self.xlane("v_add_f32", vLs, [vTMP[5 + i] for i in range(5)])
        ex += [ds_write("ds_write_b32", mlw, vNM[4 * qb], 64 * qb) for qb in range(5)] + [ds_write("ds_write_b32", mlw2, vLs[qb], 64 * qb) for qb in range(5)]
        for k, i_ in enumerate(ex): gaps[last[(k * 18) // len(ex)]].append(i_)
        tail = []
        for k in range(20):
            j, qb = 4 + k // 5, k % 5
            w_ = ds_write("ds_write_b128", wr, aO(j, qb), MX + k * 1024)
            pos = k + 10 if k < 10 else 20 + (k - 10) * 2
            gaps[last[max(pos, 19)]].append(w_)
        A(head[:0], self.qrd[:5], head, self.qrd[5:])
        for sl in slots:
            A(pre[sl], mf(sl) if "m" not in x else nop(2), gaps[sl])
        A(self.stamp())

    def epilogue(self):
        A, P = self.A, self.P
        rd, mlr = vTMP[10], vTMP[11]
        A(salu("s_xor_b32", sT2, sW, 2), salu("s_mul_i32", sT, sT2, 20480), valu("v_add_u32", rd, sT, vL16))
        A(salu("s_mul_i32", sT, sT2, 320), salu("s_add_u32", sT, sT, MLN), valu("v_and_b32", mlr, 15, vL), valu("v_lshl_add_u32", mlr, mlr, 2, sT), valu("v_add_u32", vTMP[12], MLL - MLN, mlr))
        A(wait_lgkm(0), barrier())
        nm = [vTMP[i] for i in range(5)]; ll = [vTMP[5 + i] for i in range(5)]
        for qb in range(5): A(ds_read("ds_read_b32", nm[qb], mlr, 64 * qb), ds_read("ds_read_b32", ll[qb], vTMP[12], 64 * qb))
        R = lambda j, qb: V(40 + 4 * (5 * j + qb), 4)
        order = [(ks, qb) for ks in range(2) for qb in range(5)]
        rdl = [ds_read("ds_read_b128", R(2 * ks + u, qb), rd, MX + ((2 * ks + u) * 5 + qb) * 1024) for (ks, qb) in order for u in range(2)]
        A(rdl[:4])
        so = [V(180 + 2 * qb, 2) for qb in range(5)]; sp = [V(190 + 2 * qb, 2) for qb in range(5)]
        for qb in range(5):
            A(valu("v_min_f32", vT1, nm[qb], vNM[4 * qb]), valu("v_sub_f32", so[qb][0], vT1, vNM[4 * qb]), valu("v_sub_f32", sp[qb][0], vT1, nm[qb]))
            A(valu("v_exp_f32", so[qb][0], so[qb][0]), valu("v_exp_f32", sp[qb][0], sp[qb][0]))
        A(rdl[4:12])
        for qb in range(5):
            A(valu("v_mul_f32", ll[qb], ll[qb], sp[qb][0]), valu("v_fmac_f32", ll[qb], vLs[qb], so[qb][0]), valu("v_rcp_f32", ll[qb], ll[qb]))
        for qb in range(5):
            A(valu("v_mul_f32", so[qb][0], so[qb][0], ll[qb]), valu("v_mul_f32", sp[qb][0], sp[qb][0], ll[qb]), valu("v_mov_b32", so[qb][1], so[qb][0]), valu("v_mov_b32", sp[qb][1], sp[qb][0]))
        A(rdl[12:])
        A(salu("s_lshl_b32", sT, sB, 5), salu("s_add_u32", sT, sT, sH), salu("s_lshl_b32", sT, sT, 1), salu("s_add_u32", sT, sT, sKG), salu("s_mul_i32", sT, sT, 20480))
        A(salu("s_mul_i32", sT2, sRG, 5120), salu("s_add_u32", sWQo, sT, sT2), salu("s_add_u32", sXo, sWQo, 10240), valu("v_add_u32", vT2, 4096, vL16))
        for k, (ks, qb) in enumerate(order):
            pk = vP[0].sub(4 * (k % 5), 4) if k < 5 else vP[1].sub(4 * (k % 5), 4)
            for u in range(2):
                j = 2 * ks + u; t = vU[u]
                A([valu("v_accvgpr_read_b32", t[e], aO(j, qb)[e]) for e in range(4)])
                A([valu("v_pk_mul_f32", R(j, qb).sub(2 * e, 2), R(j, qb).sub(2 * e, 2), sp[qb]) for e in range(2)])
                A([valu("v_pk_fma_f32", t.sub(2 * e, 2), t.sub(2 * e, 2), so[qb], R(j, qb).sub(2 * e, 2)) for e in range(2)])
                A([valu("v_cvt_pk_bf16_f32", pk[2 * u + e], t[2 * e], t[2 * e + 1]) for e in range(2)])
            A(buf_store("buffer_store_dwordx4", pk, vL16 if qb < 4 else vT2, sWS, sXo if ks else sWQo, 1024 * qb if qb < 4 else 0, P["opol"]))
        if P["tail"]: self.tail()
        if P["stamps"]:
            A(wait_vm(0), self.stamp(), raw("s_memtime s[96:97]"), raw("s_waitcnt lgkmcnt(0)", "wait"), salu("s_sub_u32", S(96), S(96), S(98)))
            A(salu("s_lshl_b32", sT, S(2), 2), salu("s_add_u32", sT, sT, sW), salu("s_lshl_b32", sT, sT, 7), salu("s_add_u32", sT, sT, STAMP_OFF), valu("v_mov_b32", vT, 0))
            for i in range(self.nst):
                A(valu("v_mov_b32", vT2, sST(i)), buf_store("buffer_store_dword", vT2, vT, sWS, sT, 4 * i))
            A(valu("v_mov_b32", vT2, S(96)), buf_store("buffer_store_dword", vT2, vT, sWS, sT, 4 * 31))
            if P.get("probe") is not None:
                A(salu("s_cmp_eq_u32", None, S(2), P.get("pwg", 101)), raw("s_cbranch_scc0 L1_done", "branch"), salu("s_cmp_eq_u32", None, sW, 0), raw("s_cbranch_scc0 L1_done", "branch"))
                A(salu("s_sub_u32", sT, sST(P["probe"]), sST(0)), salu("s_min_u32", sT, sT, 20000), salu("s_mul_i32", sT, sT, 2), salu("s_add_u32", sT, sT, sST(self.nst - 1)))
                A(label("Lspin"), raw("s_memrealtime s[96:97]"), raw("s_waitcnt lgkmcnt(0)"), salu("s_sub_u32", sT2, S(96), sT), salu("s_cmp_lt_i32", None, sT2, 0), raw("s_cbranch_scc1 Lspin", "branch"))
        A(label("L1_done"), raw("s_endpgm"))

    def tail(self):
        A, P = self.A, self.P
        g, r, cc, q, t, b0 = (vTMP[i] for i in range(6))
        A(valu("v_lshrrev_b32", g, 4, vL), valu("v_bfe_u32", r, vL, 2, 2), valu("v_and_b32", cc, 3, vL), valu("v_and_b32", q, 15, vL))
        A(valu("v_lshl_add_u32", b0, g, 2, r), valu("v_mul_u32_u24", b0, 160, b0), valu("v_lshl_add_u32", b0, cc, 3, b0))
        A(salu("s_mul_i32", sT, sKG, 26 * UNIT + 128), salu("s_mul_i32", sT2, sKG, 10 * UNIT + 128), salu("s_add_u32", sT2, sT2, 6 * UNIT))
        A(salu("s_mul_i32", sT3, sKG, -64), salu("s_add_u32", sT3, sT3, 32))
        A(valu("v_add_u32", vAR[0][0], sT, b0), valu("v_add_u32", vAR[1][0], sT2, b0))
        for aa in range(1, 5): A(valu("v_add_u32", vAR[0][aa], sT3, vAR[0][aa - 1]), valu("v_add_u32", vAR[1][aa], sT3, vAR[1][aa - 1]))
        A(salu("s_lshl_b32", sT, sKG, 12), salu("s_mul_i32", sT3, sKG, -2048), salu("s_add_u32", sT3, sT3, 1024), valu("v_add_u32", vBO[0], sT, vL16))
        for ii in range(1, 5): A(valu("v_add_u32", vBO[ii], sT3, vBO[ii - 1]))
        A(salu("s_lshl_b32", sT, sB, 5), salu("s_lshl_b32", sT2, sHG, 3), salu("s_add_u32", sT, sT, sT2), salu("s_lshl_b32", sT2, sKG, 2), salu("s_add_u32", sT, sT, sT2))
        A(salu("s_lshl_b32", sT, sT, 7), salu("s_add_u32", sKVo, sT, FL), valu("v_lshlrev_b32", t, 7, cc))
        A(wait_vm(0), barrier(), self.stamp(), self.flag_store(1))
        for i in range(3, 8): A(flat(self.wo_unit(i)))
        A(valu("v_cmp_gt_u32", VCC, 32, vCNT), raw("s_cbranch_vccz Lcnt_ok", "branch", rd=VCC.regs()))
        A(valu("v_mov_b32", vZ, 0), salu("s_lshl_b32", sT, sB, 2), self.poll("Lpoll0", sDBG, vZ, sT, 32, "v_cmp_gt_u32"), label("Lcnt_ok"))
        A(self.poll("Lpoll1", sWS, t, sKVo, 1, "v_cmp_gt_u32"), self.stamp())
        def breq(u):
            pre = []
            if u % 4 == 0:
                pre = [salu("s_add_u32", sT, sJ, u >> 2), salu("s_and_b32", sT, sT, 3), salu("s_lshl_b32", sT2, sKG, 2), salu("s_add_u32", sT, sT, sT2), salu("s_lshl_b32", sT2, sHG, 3), salu("s_add_u32", sT, sT, sT2),
                       salu("s_lshl_b32", sT2, sB, 5), salu("s_add_u32", sT, sT, sT2), salu("s_mul_i32", sT, sT, 40960), salu("s_mul_i32", sT2, sRG, 5120), salu("s_add_u32", sBo, sT, sT2)]
            else: pre = [salu("s_add_u32", sBo, sBo, 10240)]
            g_ = []
            for ii in range(5):
                g_.append(pre + [buf_load("buffer_load_dwordx4", gB(u, ii), vBO[ii], sWS, sBo, 0, "sc1")]); pre = []
            return g_
        for u in range(3): A(flat(breq(u)))
        frags = [(u, aa) for u in range(16) for aa in range(5)]
        ring = {fr: aRING[i % 4] for i, fr in enumerate(frags)}
        slots = [(u, aa, ii) for (u, aa) in frags for ii in range(5)]
        gaps = {sl: [] for sl in slots}; idx = {sl: k for k, sl in enumerate(slots)}
        head = []
        for i, (u, aa) in enumerate(frags):
            se = 0 if u < 6 else 1; off = (u if u < 6 else u - 6) * UNIT
            rd = [ds_read("ds_read_b64_tr_b16", ring[(u, aa)].sub(2 * tt, 2), vAR[se][aa], off + tt * 2560) for tt in range(2)]
            if i < 2: head += rd
            else:
                base = idx[frags[i - 2] + (0,)]
                if (u, aa) == (6, 0): gaps[slots[base + 1]] += [wait_lgkm(0), barrier()]
                gaps[slots[base + 1]].append(rd[0]); gaps[slots[base + 3]].append(rd[1])
        for u in range(13):
            for k, grp in enumerate(breq(u + 3)): gaps[slots[idx[(u, 0, 0)] + 5 * k + 2]] += grp
        A(head)
        for (u, aa, ii) in slots:
            d = gACC(5 * ii + aa)
            A(mfma16(d, ring[(u, aa)], gB(u, ii), 0 if u == 0 else d), gaps[(u, aa, ii)])
        A(self.stamp())
        wa, ra = vTMP[6], vTMP[7]
        def exc(dst, w_): return [salu("s_and_b32", sT, w_, 1), salu("s_mul_i32", sT, sT, 13312), salu("s_lshr_b32", sT2, w_, 1), salu("s_mul_i32", sT2, sT2, 26 * UNIT), salu("s_add_u32", sT, sT, sT2), valu("v_add_u32", dst, sT, vL16)]
        A(exc(wa, sW), salu("s_xor_b32", sT3, sW, 2), exc(ra, sT3))
        A(valu("v_lshrrev_b32", g, 4, vL), valu("v_and_b32", cc, 3, vL), valu("v_and_b32", q, 15, vL))
        for s_ in (15, 20, 16, 21, 12, 17, 22, 13, 18, 23, 14, 19, 24): A(ds_write("ds_write_b128", wa, gACC(s_), (s_ - 12) * 1024))
        A(salu("s_lshl_b32", sT, sB, 3), salu("s_add_u32", sT, sT, sJ), salu("s_mul_i32", sWQo, sT, 4 * 26624), salu("s_add_u32", sWQo, sWQo, PB))
        A(salu("s_mul_i32", sT, sHG, 26624), salu("s_add_u32", sXo, sWQo, sT), salu("s_lshl_b32", sT, sRG, 10), salu("s_add_u32", sT3, sXo, sT), salu("s_add_u32", sT3, sT3, 24576))
        A(salu("s_lshl_b32", sT, sKG, 30), valu("v_add_u32", vT3, sT, vL16))
        A(salu("s_mul_i32", sT, sRG, 12288), salu("s_mul_i32", sT2, sKG, 6144), salu("s_add_u32", sT, sT, sT2), salu("s_add_u32", sXo, sXo, sT), valu("v_add_u32", vT2, 4096, vL16))
        A(wait_lgkm(0), barrier())
        RR = lambda s_: V(140 + 4 * s_, 4)
        for s_ in range(13): A(ds_read("ds_read_b128", RR(s_), ra, (12 - s_) * 1024))
        for p in range(7):
            pk = V(192 + 4 * (p & 1), 4)
            for z in range(2 if p < 6 else 1):
                s_ = 2 * p + z
                A([valu("v_pk_add_f32", gACC(s_).sub(2 * e, 2), gACC(s_).sub(2 * e, 2), RR(s_).sub(2 * e, 2)) for e in range(2)])
                A([valu("v_cvt_pk_bf16_f32", pk[2 * z + e], gACC(s_)[2 * e], gACC(s_)[2 * e + 1]) for e in range(2)])
            if p < 6: A(buf_store("buffer_store_dwordx4", pk, vL16 if p < 4 else vT2, sWS, sXo, 1024 * (p & 3), "sc1"))
            else: A(buf_store("buffer_store_dwordx4", pk, vT3, sWS, sT3, 0, "sc1"))
        oa = [vTMP[8], vTMP[9]]; it, m_, i_ = vTMP[10], vTMP[11], vTMP[12]
        sIT = [sWQw, sM0x]
        for k in range(2):
            A(salu("s_lshl_b32", sT, sHG, 2), salu("s_add_u32", sT, sT, sW), salu("s_add_u32", sT, sT, 16 * k))
            A(salu("s_lshl_b32", sIT[k], sT, 10), salu("s_add_u32", sIT[k], sIT[k], sWQo))
            A(salu("s_mul_i32", sT3, sT, 43), salu("s_lshr_b32", sT3, sT3, 8), salu("s_mul_i32", sBo, sT3, 6), salu("s_sub_u32", sBo, sT, sBo), salu("s_lshr_b32", sT2, sT3, 1), salu("s_and_b32", sT3, sT3, 1))
            if k == 1:
                A(salu("s_cmp_ge_u32", None, sT, 24), salu("s_cselect_b32", sT2, sBo, sT2), salu("s_cselect_b32", sBo, 6, sBo))
            A(valu("v_and_b32", m_, 1, g), salu("s_lshl_b32", sBo, sBo, 1), valu("v_add_u32", m_, sBo, m_))
            if k == 1: A(valu("v_cmp_lt_u32", VCC, 12, m_))
            A(salu("s_mul_i32", sBo, sT3, 24), salu("s_mul_i32", sT3, sT3, -2), salu("s_add_u32", sT3, sT3, 1), valu("v_mul_i32_i24", m_, sT3, m_), valu("v_add_u32", m_, sBo, m_))
            A(valu("v_mul_u32_u24", i_, 52, m_), valu("v_lshrrev_b32", i_, 8, i_), valu("v_mul_u32_u24", it, 5, i_), valu("v_sub_u32", m_, m_, it))
            A(valu("v_lshl_add_u32", i_, i_, 4, q), salu("s_mul_i32", sT2, sT2, 80), salu("s_mul_i32", sBo, sB, 160), salu("s_add_u32", sT2, sT2, sBo), valu("v_add_u32", i_, sT2, i_))
            A(valu("v_mul_u32_u24", i_, 1280, i_), valu("v_lshl_add_u32", i_, m_, 5, i_), valu("v_lshrrev_b32", it, 1, g), valu("v_lshl_add_u32", i_, it, 4, i_), salu("s_mul_i32", sBo, sJ, 160), valu("v_add_u32", oa[k], sBo, i_))
            if k == 1:
                A(valu("v_mov_b32", it, 1 << 30), valu("v_cndmask_b32", oa[1], oa[1], it, VCC))
                A(salu("s_cmp_ge_u32", None, sT, 26), salu("s_cselect_b32", sT, 1 << 30, 0), valu("v_add_u32", vT4, sT, vL16), valu("v_add_u32", oa[1], sT, oa[1]))
        A(salu("s_lshl_b32", sT, sB, 5), salu("s_add_u32", sT, sT, sJ), salu("s_lshl_b32", sT, sT, 7), salu("s_add_u32", sKVo, sT, FL), valu("v_lshlrev_b32", t, 10, cc))
        A(wait_vm(0), barrier(), self.stamp(), self.flag_store(2))
        A(self.poll("Lpoll2", sWS, t, sKVo, 2, "v_cmp_gt_u32"), self.stamp())
        src = lambda k, h_: V(40 + 16 * k + 4 * h_, 4)
        for k in range(2):
            for h_ in range(4):
                A(buf_load("buffer_load_dwordx4", src(k, h_), vT4 if k else vL16, sWS, sIT[k], 0, "sc1"))
                if h_ < 3: A(salu("s_add_u32", sIT[k], sIT[k], 26624))
        A(salu("s_mov_b32", sT, "0xffff0000"))
        for k in range(2):
            acc = V(80 + 24 * k, 8); tmp = V(88 + 24 * k, 8); pk = V(96 + 24 * k, 4)
            for h_ in range(4):
                d = acc if h_ == 0 else tmp
                for e in range(4): A(valu("v_lshlrev_b32", d[2 * e], 16, src(k, h_)[e]), valu("v_and_b32", d[2 * e + 1], sT, src(k, h_)[e]))
                if h_: A([valu("v_pk_add_f32", acc.sub(2 * e, 2), acc.sub(2 * e, 2), tmp.sub(2 * e, 2)) for e in range(4)])
            A([valu("v_cvt_pk_bf16_f32", pk[e], acc[2 * e], acc[2 * e + 1]) for e in range(4)])
            A(valu("v_permlane16_swap_b32", pk[0], pk[2]), valu("v_permlane16_swap_b32", pk[1], pk[3]))
            A(buf_store("buffer_store_dwordx4", pk, oa[k], sOUT, 0, 0, P["outpol"]))

    def build(self):
        self.prologue(); self.qproj(); self.q_finish(); self.attention(); self.epilogue()
        out = finish(self.p, True)
        out += self.stubs
        if self.stubs:
            for a in range(2): out += finish(self.slow_path(a))
        return out

def main():
    P = dict(DEF)
    if len(sys.argv) > 2: P.update(json.loads(sys.argv[2]))
    out = sys.argv[1]
    hdr = open("standalone__gqa_block_cached__near_ridge.s.ref").read().split("; Override")[0] if P.get("hdr", 1) else ""
    s = hdr
    name = "standalone__gqa_block_cached__near_ridge_kernel"
    s += f"; @launch grid=(256,1,1) block=(256,1,1) lds={LDS1}\n"
    s += '.amdgcn_target "amdgcn-amd-amdhsa--gfx950"\n'
    s += kernel_header(name) + text(K1(P).build())
    s += kernel_desc(name, 512, 256)
    open(out, "w").write(s)

if __name__ == "__main__":
    main()
```

```python
import sys, json, math, struct
from asmlib import *

def fbits(x): return "0x%08x" % struct.unpack("<I", struct.pack("<f", x))[0]
K_ = 1024
DEF = dict(cpf=16, kvpol="nt", qpol="", stamps=0, rot=1, opol="sc1", wpol="", outpol="", tail=1, thr=65536.0, x="",
           plan={"K0": 6, "K1": 7, "K2": 8, "V0": 8, "K3": 9})

KS = [16 * K_ * i for i in range(4)]
VS = [64 * K_ + 16 * K_ * i for i in range(4)]
STG = {1: 52 * K_, 2: 88 * K_, 0: 124 * K_}
QX = 84 * K_
MX = 32 * K_
MLN = 30720
MLL = 131072
UNIT = 5120
EXC = [0, 13312, 26 * UNIT, 26 * UNIT + 13312]
PB = 20 << 20
FL = 28 << 20
LDS1 = 163840
STAMP_OFF = 16 << 20

sX, sWQ, sK, sV, sWS = S(20, 4), S(24, 4), S(28, 4), S(32, 4), S(36, 4)
sB, sH, sW, sROT = S(40), S(41), S(42), S(43)
sWQo, sXo, sKVo, sW4K, sT, sTHR, sT2, sT3 = S(44), S(45), S(46), S(47), S(48), S(49), S(50), S(51)
sRET = S(52, 2); sC2 = S(54, 2); sWQw, sM0x, sRG, sKG = S(56), S(57), S(58), S(59)
sST = lambda i: S(60 + i)
sSTT = S(96, 2)
vTID, vL, vL16, vT = V(0), V(1), V(2), V(3)
vKD = [V(4 + j) for j in range(4)]; vVD = [V(8), V(9)]
vKR = [V(10 + j) for j in range(4)]; vVR = [V(14 + j) for j in range(8)]
vLs = [V(22 + j) for j in range(5)]; vBS = [V(27 + j) for j in range(5)]
vE = [V(32 + j) for j in range(4)]; vT1, vT2, vT3, vT4 = V(36), V(37), V(38), V(39)
vS = [V(40, 40), V(80, 40)]; vP = [V(120, 20), V(140, 20)]; vNM = V(160, 20)
vACC = lambda a, qb: V(40 + 4 * (5 * a + qb), 4)
vWD = [V(180 + j) for j in range(4)]; vXD = [V(184 + j) for j in range(5)]
vQA = [[V(190 + j) for j in range(4)], [V(196 + j) for j in range(4)]]
vQB = [[V(194), V(195)], [V(200), V(201)]]
vTMP = V(204, 20)
vWO = [V(224 + j) for j in range(5)]; vCNT = V(229)
vAR = [[V(230 + j) for j in range(5)], [V(235 + j) for j in range(5)]]; vBO = [V(240 + j) for j in range(5)]
vU = [V(246, 4), V(250, 4)]; vZ = V(254)
sWO, sDBG, sOUT = S(80, 4), S(84, 4), S(88, 4)
sJ, sHG, sSPIN, sBo = S(92), S(93), S(94), S(95)
gACC = lambda s_: V(40 + 4 * s_, 4)
gB = lambda u, ii: V(140 + 20 * (u & 3) + 4 * ii, 4)
aO = lambda j, qb: Ac(4 * (5 * j + qb), 4)
aRING = [Ac(160 + 4 * i, 4) for i in range(4)]
aQ = lambda qb, ks: Ac(176 + 4 * (4 * qb + ks), 4)
aFA = lambda p, a: Ac(36 * p + 4 * a, 4)
aFB = lambda p, qb: Ac(36 * p + 16 + 4 * qb, 4)
flat = lambda g: [i for x in g for i in x]

class K1:
    def __init__(self, P):
        self.P = P; self.p = []; self.nst = 0; self.stubs = []
    def A(self, *x):
        for i in x:
            if isinstance(i, list): self.p += i
            else: self.p.append(i)
    def stamp(self):
        if self.P["stamps"]:
            i = self.nst; self.nst += 1
            op = 's_memrealtime' if self.P['stamps'] == 1 else 's_memtime'
            return [raw(f"{op} {sSTT} ; stamp"), raw("s_waitcnt lgkmcnt(0)", "wait_lg0"), salu("s_mov_b32", sST(i), sSTT[0])]
        return []

    def prologue(self):
        A, P = self.A, self.P
        A(raw("s_cmp_ge_u32 s2, 256"), raw("s_cbranch_scc1 L1_done", "branch"))
        A(self.stamp())
        if P["stamps"]: A(raw("s_memtime s[98:99]"))
        A(raw("s_load_dwordx8 s[4:11], s[0:1], 0"), raw("s_load_dwordx8 s[12:19], s[0:1], 32"))
        A(valu("v_lshrrev_b32", vT, 6, vTID), valu("v_and_b32", vL, 63, vTID), valu("v_readfirstlane_b32", sW, vT))
        A(salu("s_and_b32", sB, S(2), 1), salu("s_lshl_b32", sB, sB, 2), salu("s_lshr_b32", sT, S(2), 6), salu("s_add_u32", sB, sB, sT))
        A(salu("s_lshr_b32", sH, S(2), 1), salu("s_and_b32", sH, sH, 3), salu("s_lshl_b32", sH, sH, 3), salu("s_lshr_b32", sT, S(2), 3), salu("s_and_b32", sT, sT, 7), salu("s_add_u32", sH, sH, sT))
        if P["rot"]:
            A(salu("s_and_b32", sT, sB, 3), salu("s_and_b32", sT2, sH, 7), salu("s_mul_i32", sT, sT, 10), salu("s_mul_i32", sT2, sT2, 5),
              salu("s_add_u32", sROT, sT, sT2), salu("s_lshr_b32", sROT, sROT, 2), salu("s_cmp_ge_u32", None, sROT, 10),
              salu("s_cselect_b32", sT, 10, 0), salu("s_sub_u32", sROT, sROT, sT))
        else:
            A(salu("s_mov_b32", sROT, 0))
        A(salu("s_lshl_b32", sW4K, sW, 12), salu("s_lshl_b32", sWQw, sW, 17), salu("s_mul_i32", sM0x, sW, 5120))
        row4, c16 = vT1, vT2
        A(valu("v_lshrrev_b32", row4, 4, vL), valu("v_and_b32", c16, 15, vL))
        A(valu("v_lshlrev_b32", vT, 1, row4), valu("v_xor_b32", vT, vT, c16), valu("v_lshlrev_b32", vT, 4, vT))
        A(valu("v_lshl_add_u32", vWD[0], row4, 13, vT), valu("v_lshl_add_u32", vVD[0], row4, 8, vT))
        A(valu("v_add_u32", vWD[1], 32768 - 1024, vWD[0]), valu("v_xor_b32", vWD[2], 128, vWD[0]))
        A(valu("v_add_u32", vWD[3], 3 * (32768 - 1024), vWD[2]), valu("v_add_u32", vWD[2], 2 * (32768 - 1024), vWD[2]))
        row8, c8 = vT3, vT4
        A(valu("v_lshrrev_b32", row8, 3, vL), valu("v_and_b32", c8, 7, vL), salu("s_and_b32", sRG, sW, 1), salu("s_lshl_b32", sT2, sRG, 6), salu("s_mul_i32", sT, sW, 5 * 8 * 1280))
        A(valu("v_lshrrev_b32", vT, 1, row8), valu("v_xor_b32", vT, vT, c8), valu("v_lshlrev_b32", vT, 4, vT), valu("v_xor_b32", vT, sT2, vT))
        A(valu("v_mul_u32_u24", row8, 1280, row8), valu("v_add_u32", row8, sT, row8), valu("v_add_u32", vXD[0], row8, vT), valu("v_xor_b32", vT, 64, vT), valu("v_add_u32", vXD[1], row8, vT))
        A(valu("v_add_u32", vXD[2], 2 * (10240 - 1024), vXD[0]), valu("v_add_u32", vXD[3], 3 * (10240 - 1024), vXD[1]), valu("v_add_u32", vXD[4], 4 * 10240, vXD[0]), valu("v_add_u32", vXD[1], 10240 - 1024, vXD[1]))
        if P.get("cpf"):
            n = P["cpf"]
            A(raw("s_getpc_b64 s[76:77]", wr=S(76, 2).regs()), label("Lpc"), salu("s_and_b32", S(76), S(76), "0xffffff80"), salu("s_mov_b32", S(78), "L1_done-Lpc"), salu("s_mov_b32", S(79), "0x20000"))
            A(salu("s_lshr_b32", sT, S(2), 3), salu("s_and_b32", sT, sT, 512 // (4 * n) - 1), salu("s_lshl_b32", sT, sT, 2), salu("s_add_u32", sT, sT, sW), salu("s_mul_i32", sT, sT, n * 128))
            A(valu("v_lshlrev_b32", vZ, 7, vL), valu("v_cmp_gt_u32", VCC, n, vL), valu("v_mov_b32", vCNT, 1 << 30), valu("v_cndmask_b32", vZ, vCNT, vZ, VCC))
            A(buf_load("buffer_load_dword", vCNT, vZ, S(76, 4), sT))
        A(raw("s_waitcnt lgkmcnt(0)", "wait"))
        A(salu("s_lshl_b32", sT, sH, 8), salu("s_add_u32", sWQ[0], S(10), sT), salu("s_addc_u32", sWQ[1], S(11), 0), salu("s_sub_u32", sWQ[2], 5242880, sT), salu("s_mov_b32", sWQ[3], "0x20000"))
        A(salu("s_mul_i32", sT, sB, 204800), salu("s_add_u32", sX[0], S(4), sT), salu("s_addc_u32", sX[1], S(5), 0), salu("s_mov_b32", sX[2], 204800), salu("s_mov_b32", sX[3], "0x20000"))
        A(flat(self.chunk_dma(0)))
        A(salu("s_lshl_b32", sT, sB, 5), salu("s_add_u32", sT, sT, sH), salu("s_lshl_b32", sT, sT, 18))
        if P.get("hot"): A(salu("s_mov_b32", sT, 0))
        A(salu("s_add_u32", sK[0], S(6), sT), salu("s_addc_u32", sK[1], S(7), 0), salu("s_mov_b32", sK[2], 262144), salu("s_mov_b32", sK[3], "0x20000"))
        A(salu("s_add_u32", sV[0], S(8), sT), salu("s_addc_u32", sV[1], S(9), 0), salu("s_mov_b32", sV[2], 262144), salu("s_mov_b32", sV[3], "0x20000"))
        A(salu("s_mov_b32", sWS[0], S(18)), salu("s_mov_b32", sWS[1], S(19)), salu("s_mov_b32", sWS[2], 32 << 20), salu("s_mov_b32", sWS[3], "0x20000"))
        A(salu("s_mov_b32", sTHR, fbits(P["thr"])), salu("s_lshr_b32", sKG, sW, 1))
        c = fbits(math.log2(math.e) / math.sqrt(128.0))
        A(salu("s_mov_b32", sC2[0], c), salu("s_mov_b32", sC2[1], c))
        A(valu("v_xor_b32", vVD[1], 128, vVD[0]), valu("v_lshlrev_b32", vL16, 4, vL))
        for j in range(4):
            A(valu("v_add_u32", vT, 4 * j, row4), valu("v_xor_b32", vT, vT, c16), valu("v_lshlrev_b32", vT, 4, vT), valu("v_lshl_add_u32", vKD[j], row4, 8, vT))
        g, r, cc, q, t, f, b0 = (vTMP[i] for i in range(7))
        A(valu("v_lshrrev_b32", g, 4, vL), valu("v_bfe_u32", r, vL, 2, 2), valu("v_and_b32", cc, 3, vL), valu("v_and_b32", q, 15, vL))
        A(valu("v_and_b32", f, 1, g), valu("v_lshl_add_u32", f, f, 2, r))
        A(valu("v_lshl_add_u32", b0, g, 3, r), valu("v_lshlrev_b32", b0, 8, b0), valu("v_lshl_add_u32", b0, cc, 3, b0))
        A(salu("s_lshl_b32", sT, sKG, 2), valu("v_xor_b32", t, sT, f), valu("v_lshl_add_u32", b0, t, 5, b0))
        for a in range(4):
            A(valu("v_xor_b32", t, 32 * a, b0), valu("v_add_u32", vQA[0][a], STG[1], t), valu("v_add_u32", vQA[1][a], STG[0], t))
        A(valu("v_lshrrev_b32", t, 1, q), valu("v_xor_b32", t, t, g), valu("v_lshlrev_b32", t, 4, t), valu("v_lshl_add_u32", b0, q, 7, t))
        A(salu("s_mul_i32", sT, sRG, 10240), salu("s_add_u32", sT2, sT, STG[1] + 16384), salu("s_add_u32", sT3, sT, STG[0] + 16384))
        A(valu("v_xor_b32", t, 64, b0), valu("v_add_u32", vQB[0][0], sT2, b0), valu("v_add_u32", vQB[0][1], sT2, t), valu("v_add_u32", vQB[1][0], sT3, b0), valu("v_add_u32", vQB[1][1], sT3, t))
        A(flat(self.chunk_dma(1)))
        A(salu("s_lshl_b32", sT, sKG, 13))
        A(valu("v_xor_b32", t, q, g), valu("v_lshlrev_b32", t, 4, t), valu("v_lshl_add_u32", b0, q, 8, t), valu("v_add_u32", b0, sT, b0))
        for ks in range(4): A(valu("v_xor_b32", vKR[ks], 64 * ks, b0))
        A(valu("v_lshl_add_u32", b0, g, 2, r), valu("v_lshlrev_b32", b0, 8, b0), valu("v_lshl_add_u32", b0, cc, 3, b0), salu("s_add_u32", sT, sT, VS[0]), valu("v_add_u32", b0, sT, b0))
        A(salu("s_lshl_b32", sT, sKG, 2), valu("v_xor_b32", t, sT, f), valu("v_lshl_add_u32", b0, t, 5, b0))
        for j in range(8): A(valu("v_xor_b32", vVR[j], 32 * j, b0))
        for qb in range(5): A(valu("v_mov_b32", vLs[qb], 0))
        if P["tail"]:
            A(salu("s_and_b32", sJ, sH, 7), salu("s_lshr_b32", sHG, sH, 3))
            A(salu("s_mul_i32", sT, sJ, 160), salu("s_add_u32", sWO[0], S(12), sT), salu("s_addc_u32", sWO[1], S(13), 0), salu("s_sub_u32", sWO[2], 5242880, sT), salu("s_mov_b32", sWO[3], "0x20000"))
            A(salu("s_mov_b32", sDBG[0], S(16)), salu("s_mov_b32", sDBG[1], S(17)), salu("s_mov_b32", sDBG[2], 256), salu("s_mov_b32", sDBG[3], "0x20000"))
            A(salu("s_mov_b32", sOUT[0], S(14)), salu("s_mov_b32", sOUT[1], S(15)), salu("s_mov_b32", sOUT[2], 1638400), salu("s_mov_b32", sOUT[3], "0x20000"))
            for m in range(5):
                A(valu("v_add_u32", t, 64 * m, vL), valu("v_mul_u32_u24", b0, 6554, t), valu("v_lshrrev_b32", b0, 16, b0), valu("v_mul_u32_u24", vZ, 1280 - 160, b0))
                A(valu("v_lshl_add_u32", vWO[m], t, 4, vZ))
                if 0 < m < 4: A(valu("v_subrev_u32", vWO[m], 1024 * m, vWO[m]))

    def one_lane(self, dst):
        return [valu("v_min_u32", dst, 1, vTID), valu("v_lshlrev_b32", dst, 30, dst)]
    def flag_store(self, val):
        o = self.one_lane(vZ) + [valu("v_mov_b32", vT, val), salu("s_lshl_b32", sT, sB, 5), salu("s_add_u32", sT, sT, sH), salu("s_lshl_b32", sT, sT, 7), salu("s_add_u32", sT, sT, FL)]
        return o + [buf_store("buffer_store_dword", vT, vZ, sWS, sT, 0, "sc1", "flag")]
    def wo_unit(self, i):
        pol = self.P["wpol"]; g = []
        pre = [salu("s_add_u32", sT2, sRG, 2 * i), salu("s_lshr_b32", sT3, sT2, 2), salu("s_add_u32", sT3, sT3, sJ), salu("s_and_b32", sT3, sT3, 3), salu("s_lshl_b32", sT3, sT3, 2),
               salu("s_and_b32", sBo, sT2, 3), salu("s_add_u32", sT3, sT3, sBo), salu("s_lshl_b32", sBo, sKG, 4), salu("s_add_u32", sT3, sT3, sBo), salu("s_lshl_b32", sBo, sHG, 5),
               salu("s_add_u32", sT3, sT3, sBo), salu("s_mul_i32", sBo, sT3, 32 * 1280),
               salu("s_mul_i32", sT3, sKG, 26 if i < 3 else 10), salu("s_add_u32", sT2, sT2, sT3), salu("s_mul_i32", sT2, sT2, UNIT), salu("s_mov_b32", M0, sT2)]
        for m in range(5):
            if m == 4: pre = [salu("s_add_u32", M0, sT2, 4096), nop(0)]
            g.append(pre + [buf_dma(vWO[m], sWO, sBo, 1024 * m if m < 4 else 0, pol, "wo")]); pre = []
        return g
    def poll(self, name, srd, addr, soff, val, cmp):
        return [salu("s_mov_b32", sSPIN, 1 << 18), label(name), buf_load("buffer_load_dword", vT1, addr, srd, soff, 0, "sc1"), raw("s_waitcnt vmcnt(0)", "wait_vm0"),
                salu("s_sub_u32", sSPIN, sSPIN, 1), valu(cmp, VCC, val, vT1), raw(f"s_cbranch_scc1 {name}_x", "branch"), raw(f"s_cbranch_vccnz {name}", "branch", rd=VCC.regs()), label(name + "_x")]
    def chunk_dma(self, c):
        pol = self.P["qpol"]; base = STG[c % 3]; tag = ("c", c); g = []
        pre = [salu("s_lshl_b32", sWQo, sROT, 19), salu("s_add_u32", M0, sW4K, base), salu("s_add_u32", sWQo, sWQo, sWQw)]
        imm = [0, 1024, 2048, 3072]
        for j in range(4):
            g.append((pre if j == 0 else []) + [buf_dma(vWD[j], sWQ, sWQo, imm[j], pol, tag)])
        for j in range(5):
            pre = []
            if j == 0: pre = [salu("s_add_u32", M0, sM0x, base + 16384), salu("s_lshl_b32", sXo, sROT, 7)]
            if j == 4: pre = [salu("s_add_u32", M0, sM0x, base + 16384 + 4096), salu("s_add_u32", sROT, sROT, 1), salu("s_cmp_eq_u32", None, sROT, 10), salu("s_cselect_b32", sROT, 0, sROT)]
            g.append(pre + [buf_dma(vXD[j], sX, sXo, 1024 * j if j < 4 else 0, pol, tag)])
        return g
    def kv_req(self, name):
        kv, n = name[0], int(name[1:]); pol = self.P.get(kv.lower() + "pol", self.P["kvpol"]); g = []
        srd = sK if kv == "K" else sV; slot = (KS if kv == "K" else VS)[n & 3]
        for j in range(4):
            voff = vKD[j] if kv == "K" else vVD[j & 1]
            pre = [salu("s_add_u32", M0, sW4K, slot), salu("s_add_u32", sKVo, sW4K, n * 16384)] if j == 0 else []
            g.append(pre + [buf_dma(voff, srd, sKVo, 1024 * j, pol, name)])
        return g

    def q_reads(self, c, s):
        st = STG[c % 3]; se = 1 if st == STG[0] else 0; rel = st - (STG[0] if se else STG[1]); p = s & 1
        rA = lambda a, t: ds_read("ds_read_b64_tr_b16", aFA(p, a).sub(2 * t, 2), vQA[se][a], rel + (32 * s + 4 * t) * 256)
        rB = lambda qb: ds_read("ds_read_b128", aFB(p, qb), vQB[se][s], rel + qb * 2048)
        return [rB(0), rA(0, 0), rA(0, 1), rB(1), rB(2), rB(3), rB(4), rA(1, 0), rA(1, 1), rA(2, 0), rA(2, 1), rA(3, 0), rA(3, 1)]
    def qproj(self):
        A, P = self.A, self.P; plan = P["plan"]
        A(flat([flat(self.kv_req(n)) for n in ("K0", "K1", "K2") if plan.get(n) == "pro"]))
        A(wait_vm_tag(("c", 0)), barrier(), self.stamp(), self.q_reads(0, 0))

        slots = [(c, s, i) for c in range(10) for s in range(2) for i in range(20)]
        gaps = {sl: [] for sl in slots}; idx = {sl: k for k, sl in enumerate(slots)}
        nxt = [0]
        def place(groups, start, step):
            k = max(start, nxt[0])
            for grp in groups:
                gaps[slots[min(k, len(slots) - 1)]] += grp; k += step
            nxt[0] = k
        for c in range(10):
            rd = self.q_reads(c, 1)
            for k, r_ in enumerate(rd): gaps[(c, 0, (k * 3) // 2)].append(r_)
            if c < 9:
                rd = self.q_reads(c + 1, 0)
                gaps[(c, 1, 5)] += [wait_lgkm(0), wait_vm_tag(("c", c + 1)), barrier()] + (self.stamp() if P.get("qst") else [])
                for k, r_ in enumerate(rd): gaps[(c, 1, 5 + k)].append(r_)
        place(self.chunk_dma(2), 1, 2)
        for c in range(10):
            for n in ("K0", "K1", "K2", "V0", "K3"):
                if plan.get(n) == c: place(self.kv_req(n), idx[(c, 0, 0)], 2)
            if c + 3 < 10: place(self.chunk_dma(c + 3), idx[(c, 1, 7)], P.get("qsp", 3))
        for (c, s, i) in slots:
            a, qb = divmod(i, 5); p = s
            m = mfma16(vACC(a, qb), aFA(p, a), aFB(p, qb), 0 if (c == 0 and s == 0) else vACC(a, qb))
            A(m, gaps[(c, s, i)])
    def q_finish(self):
        A, P = self.A, self.P
        g, q, t, wa, ra = vTMP[0], vTMP[3], vTMP[4], vTMP[8], vTMP[9]
        A(salu("s_mul_i32", sT, sRG, 20480), salu("s_add_u32", sT, sT, QX), valu("v_add_u32", ra, sT, vL16), salu("s_lshl_b32", sT2, sKG, 11), salu("s_add_u32", sT, sT, sT2))
        A(valu("v_lshrrev_b32", t, 1, g), valu("v_lshlrev_b32", wa, 8, t), valu("v_lshl_add_u32", wa, q, 4, wa), valu("v_and_b32", t, 1, g), valu("v_lshl_add_u32", wa, t, 3, wa), valu("v_add_u32", wa, sT, wa))
        k = 0
        for a in range(4):
            for qb in range(5):
                acc = vACC(a, qb); d = vTMP.sub(12 + 2 * (k % 4), 2); k += 1
                A(valu("v_pk_mul_f32", acc.sub(0, 2), acc.sub(0, 2), sC2), valu("v_pk_mul_f32", acc.sub(2, 2), acc.sub(2, 2), sC2))
                A(valu("v_cvt_pk_bf16_f32", d[0], acc[0], acc[1]), valu("v_cvt_pk_bf16_f32", d[1], acc[2], acc[3]))
                A(ds_write("ds_write_b64", wa, d, qb * 4096 + (a >> 1) * 1024 + (a & 1) * 512))
        A(wait_lgkm(0), wait_vm_tag("K0"), barrier(), self.stamp())
        self.qrd = [ds_read("ds_read_b128", aQ(qb, ks), ra, (qb * 4 + ks) * 1024) for ks in range(4) for qb in range(5)]

    def colmax(self, dst, src8, tmp):
        o = [valu("v_max3_f32", dst, src8[0], src8[1], src8[2]), valu("v_max3_f32", dst, dst, src8[3], src8[4]), valu("v_max3_f32", dst, dst, src8[5], src8[6]), valu("v_max_f32", dst, dst, src8[7])]
        return o
    def xlane(self, op, regs, tmps):
        o = []
        for sw in ("v_permlane32_swap_b32", "v_permlane16_swap_b32"):
            o += [valu("v_mov_b32", t, r) for r, t in zip(regs, tmps)]
            o += [valu(sw, r, t) for r, t in zip(regs, tmps)]
            o += [valu(op, r, r, t) for r, t in zip(regs, tmps)]
        return o
    def softmax_list(self, a):
        Sx, Px = vS[a], vP[a]; o = []
        for e in range(41):
            if e < 40: o.append(valu("v_exp_f32", vE[e & 3], Sx[e]))
            p = e - 1
            if p >= 0:
                qb, j = divmod(p, 8)
                if j == 1: o.append(valu("v_add_f32", vBS[qb], vE[(p - 1) & 3], vE[p & 3]))
                elif j > 1: o.append(valu("v_add_f32", vBS[qb], vBS[qb], vE[p & 3]))
                if j & 1: o.append(valu("v_cvt_pk_bf16_f32", Px[4 * qb + (j >> 1)], vE[(p - 1) & 3], vE[p & 3]))
        x = self.P["x"]
        if "e" in x: o = [i for i in o if not i.txt.startswith("v_exp")]
        if "a" in x: o = [i for i in o if not i.txt.startswith("v_add")]
        if "c" in x: o = [i for i in o if not i.txt.startswith("v_cvt")]
        return o
    def slow_path(self, a):
        dl = [vTMP[i] for i in range(5)]; tm = [vTMP[5 + i] for i in range(5)]; ff = [vTMP[10 + i] for i in range(5)]
        o = [label(f"Lslow{a}"), nop(15)]
        for qb in range(5): o += self.colmax(dl[qb], vS[a].sub(8 * qb, 8), None)
        o += self.xlane("v_max_f32", dl, tm)
        for qb in range(5): o += [valu("v_max_f32", dl[qb], 0, dl[qb]), valu("v_exp_f32", ff[qb], Neg(dl[qb]))]
        for qb in range(5):
            for e in range(4): o.append(valu("v_sub_f32", vNM[4 * qb + e], vNM[4 * qb + e], dl[qb]))
            for e in range(8): o += [valu("v_sub_f32", vS[a][8 * qb + e], vS[a][8 * qb + e], dl[qb]), valu("v_sub_f32", vS[a ^ 1][8 * qb + e], vS[a ^ 1][8 * qb + e], dl[qb])]
            o.append(valu("v_mul_f32", vLs[qb], vLs[qb], ff[qb]))
        for j in range(8):
            for qb in range(5):
                for k in range(4): o.append(valu("v_accvgpr_read_b32", vE[k], aO(j, qb)[k]))
                for k in range(4): o.append(valu("v_mul_f32", vE[k], vE[k], ff[qb]))
                for k in range(4): o.append(valu("v_accvgpr_write_b32", aO(j, qb)[k], vE[k]))
        o += self.softmax_list(a)
        o += [nop(4), raw(f"s_setpc_b64 {sRET}", "branch")]
        return o

    def attention(self):
        A, P = self.A, self.P; x = P["x"]; plan = P["plan"]
        JORD = [4, 5, 6, 7, 0, 1, 2, 3]
        frags = []
        for n in range(-1, 17):
            if n + 1 <= 15: frags += [(n, f) for f in range(8)]
            if n - 1 >= 0: frags += [(n, f) for f in range(8, 16)]
        ring = {fr: aRING[i % 4] for i, fr in enumerate(frags)}
        slots = [(n, f, qb) for (n, f) in frags for qb in range(5)]
        gaps = {sl: [] for sl in slots}; pre = {sl: [] for sl in slots}; idx = {sl: k for k, sl in enumerate(slots)}
        def reads(fr):
            n, f = fr
            if f < 8:
                kb, ks = f >> 2, f & 3
                return [] if "k" in x else [ds_read("ds_read_b128", ring[fr], vKR[ks], KS[(n + 1) & 3] + kb * 4096)]
            j = JORD[f - 8]
            return [] if "v" in x else [ds_read("ds_read_b64_tr_b16", ring[fr].sub(2 * t, 2), vVR[j], VS[(n - 1) & 3] - VS[0] + t * 4096) for t in range(2)]
        def mf(sl):
            n, f, qb = sl
            if f < 8:
                b = n + 1; kb, ks = f >> 2, f & 3; d = vS[b & 1].sub(8 * qb + 4 * kb, 4)
                return mfma16(d, ring[(n, f)], aQ(qb, ks), d if ks else (0 if b == 0 else vNM.sub(4 * qb, 4)))
            b = n - 1; j = JORD[f - 8]; d = aO(j, qb)
            return mfma16(d, ring[(n, f)], vP[b & 1].sub(4 * qb, 4), 0 if b == 0 else d)
        head = []
        LA = 2
        for i, fr in enumerate(frags):
            n, f = fr
            first = (i == [k for k, z in enumerate(frags) if z[0] == n][0])
            if i < LA: tgt = [head, head]
            else:
                base = idx[frags[i - LA] + (0,)]
                tgt = [gaps[slots[base + 1]], gaps[slots[base + 3]]]
            if first and n >= 0:
                sy = [wait_lgkm(0)]
                if n + 1 <= 15: sy.append(wait_vm_tag(f"K{n+1}"))
                if n - 1 >= 0: sy.append(wait_vm_tag(f"V{n-1}"))
                sy += [barrier()] + (self.stamp() if n % (8 if P.get("qst") else 2) == 0 else [])
                tgt[0] += sy
                req = []
                if n == 0:
                    for nm in ("K1", "K2", "V0", "K3", "V1"):
                        if nm not in plan: req += self.kv_req(nm)
                    req += self.kv_req("K4") + self.kv_req("V2")
                elif n == 1: req += self.kv_req("K5") + self.kv_req("V3")
                else:
                    if n + 4 <= 15: req += self.kv_req(f"K{n+4}")
                    if n + 2 <= 15: req += self.kv_req(f"V{n+2}")
                if "d" in x and n >= 1: req = []
                if P["tail"]:
                    if n == 1: req += [self.flag_store(0)]
                    if n == 5: req += [[wait_vm_tag("flag"), valu("v_mov_b32", vT, 1)] + self.one_lane(vZ) + [salu("s_lshl_b32", sT, sB, 2),
                                       I(f"buffer_atomic_add {vT}, {vZ}, {sDBG}, {sT} offen", "vm_st", rd=regs_of(vT, vZ, sDBG, sT))]]
                    if n == 12: req += [[valu("v_mov_b32", vZ, 0), salu("s_lshl_b32", sT, sB, 2), buf_load("buffer_load_dword", vCNT, vZ, sDBG, sT, 0, "sc1")]]
                    if n == 13: req += self.wo_unit(0)
                    if n == 14: req += self.wo_unit(1) + self.wo_unit(2)
                sp = P.get("sp", 8) if 0 < n < 14 else (2 if n == 0 else 4)
                for q_, grp in enumerate(req): gaps[slots[base + 4 + sp * q_]] += grp
            rd = reads(fr)
            for k, r_ in enumerate(rd): tgt[k].append(r_)
        for n in range(0, 16):
            have = [sl for sl in slots if sl[0] == n]
            if n == 0:
                dl = [vTMP[i] for i in range(5)]; tm = [vTMP[5 + i] for i in range(5)]; o = []
                for qb in range(5): o += self.colmax(dl[qb], vS[0].sub(8 * qb, 8), None)
                o += self.xlane("v_max_f32", dl, tm)
                for qb in range(5):
                    for e in range(4): o.append(valu("v_sub_f32", vNM[4 * qb + e], 0, dl[qb]))
                for qb in range(5):
                    for e in range(8): o.append(valu("v_sub_f32", vS[0][8 * qb + e], vS[0][8 * qb + e], dl[qb]))
                pre[have[0]] += o
            sm = self.softmax_list(n & 1)
            ng = len(have) - 4
            cost = [2 if i.trans else 1 for i in sm]; tot = sum(cost); acc = 0
            for i_, c_ in zip(sm, cost):
                gaps[have[min(ng - 1, (acc * ng) // max(tot, 1))]].append(i_); acc += c_
            addl = [valu("v_add_f32", vLs[qb], vLs[qb], vBS[qb]) for qb in range(5)]
            if n > 0 and "b" not in x:
                gaps[have[-4]].append(valu("v_max3_f32", vT1, vBS[0], vBS[1], vBS[2]))
                gaps[have[-3]].append(valu("v_max3_f32", vT1, vT1, vBS[3], vBS[4]))
                gaps[have[-2]].append(valu("v_cmp_nge_f32", VCC, sTHR, vT1))
                gaps[have[-1]] += [raw(f"s_cbranch_vccnz Lstub{n}", "branch", rd=VCC.regs()), label(f"Lret{n}")]
                self.stubs += [label(f"Lstub{n}"), raw(f"s_call_b64 {sRET}, Lslow{n & 1}", "branch"), raw(f"s_branch Lret{n}", "branch")]
            gaps[have[-1]] += addl
        last = [sl for sl in slots if sl[0] == 16]
        wr, mlw, mlw2 = vTMP[15], vTMP[16], vTMP[17]
        ex = [salu("s_mul_i32", sT, sW, 20480), valu("v_add_u32", wr, sT, vL16), salu("s_mul_i32", sT, sW, 320), salu("s_add_u32", sT, sT, MLN), valu("v_and_b32", mlw, 15, vL), valu("v_lshl_add_u32", mlw, mlw, 2, sT), valu("v_add_u32", mlw2, MLL - MLN, mlw)]
        ex += self.xlane("v_add_f32", vLs, [vTMP[5 + i] for i in range(5)])
        ex += [ds_write("ds_write_b32", mlw, vNM[4 * qb], 64 * qb) for qb in range(5)] + [ds_write("ds_write_b32", mlw2, vLs[qb], 64 * qb) for qb in range(5)]
        for k, i_ in enumerate(ex): gaps[last[(k * 18) // len(ex)]].append(i_)
        tail = []
        for k in range(20):
            j, qb = 4 + k // 5, k % 5
            w_ = ds_write("ds_write_b128", wr, aO(j, qb), MX + k * 1024)
            pos = k + 10 if k < 10 else 20 + (k - 10) * 2
            gaps[last[max(pos, 19)]].append(w_)
        A(head[:0], self.qrd[:5], head, self.qrd[5:])
        for sl in slots:
            A(pre[sl], mf(sl) if "m" not in x else nop(2), gaps[sl])
        A(self.stamp())

    def epilogue(self):
        A, P = self.A, self.P
        rd, mlr = vTMP[10], vTMP[11]
        A(salu("s_xor_b32", sT2, sW, 2), salu("s_mul_i32", sT, sT2, 20480), valu("v_add_u32", rd, sT, vL16))
        A(salu("s_mul_i32", sT, sT2, 320), salu("s_add_u32", sT, sT, MLN), valu("v_and_b32", mlr, 15, vL), valu("v_lshl_add_u32", mlr, mlr, 2, sT), valu("v_add_u32", vTMP[12], MLL - MLN, mlr))
        A(wait_lgkm(0), barrier())
        nm = [vTMP[i] for i in range(5)]; ll = [vTMP[5 + i] for i in range(5)]
        for qb in range(5): A(ds_read("ds_read_b32", nm[qb], mlr, 64 * qb), ds_read("ds_read_b32", ll[qb], vTMP[12], 64 * qb))
        R = lambda j, qb: V(40 + 4 * (5 * j + qb), 4)
        order = [(ks, qb) for ks in range(2) for qb in range(5)]
        rdl = [ds_read("ds_read_b128", R(2 * ks + u, qb), rd, MX + ((2 * ks + u) * 5 + qb) * 1024) for (ks, qb) in order for u in range(2)]
        A(rdl[:4])
        so = [V(180 + 2 * qb, 2) for qb in range(5)]; sp = [V(190 + 2 * qb, 2) for qb in range(5)]
        for qb in range(5):
            A(valu("v_min_f32", vT1, nm[qb], vNM[4 * qb]), valu("v_sub_f32", so[qb][0], vT1, vNM[4 * qb]), valu("v_sub_f32", sp[qb][0], vT1, nm[qb]))
            A(valu("v_exp_f32", so[qb][0], so[qb][0]), valu("v_exp_f32", sp[qb][0], sp[qb][0]))
        A(rdl[4:12])
        for qb in range(5):
            A(valu("v_mul_f32", ll[qb], ll[qb], sp[qb][0]), valu("v_fmac_f32", ll[qb], vLs[qb], so[qb][0]), valu("v_rcp_f32", ll[qb], ll[qb]))
        for qb in range(5):
            A(valu("v_mul_f32", so[qb][0], so[qb][0], ll[qb]), valu("v_mul_f32", sp[qb][0], sp[qb][0], ll[qb]), valu("v_mov_b32", so[qb][1], so[qb][0]), valu("v_mov_b32", sp[qb][1], sp[qb][0]))
        A(rdl[12:])
        A(salu("s_lshl_b32", sT, sB, 5), salu("s_add_u32", sT, sT, sH), salu("s_lshl_b32", sT, sT, 1), salu("s_add_u32", sT, sT, sKG), salu("s_mul_i32", sT, sT, 20480))
        A(salu("s_mul_i32", sT2, sRG, 5120), salu("s_add_u32", sWQo, sT, sT2), salu("s_add_u32", sXo, sWQo, 10240), valu("v_add_u32", vT2, 4096, vL16))
        for k, (ks, qb) in enumerate(order):
            pk = vP[0].sub(4 * (k % 5), 4) if k < 5 else vP[1].sub(4 * (k % 5), 4)
            for u in range(2):
                j = 2 * ks + u; t = vU[u]
                A([valu("v_accvgpr_read_b32", t[e], aO(j, qb)[e]) for e in range(4)])
                A([valu("v_pk_mul_f32", R(j, qb).sub(2 * e, 2), R(j, qb).sub(2 * e, 2), sp[qb]) for e in range(2)])
                A([valu("v_pk_fma_f32", t.sub(2 * e, 2), t.sub(2 * e, 2), so[qb], R(j, qb).sub(2 * e, 2)) for e in range(2)])
                A([valu("v_cvt_pk_bf16_f32", pk[2 * u + e], t[2 * e], t[2 * e + 1]) for e in range(2)])
            A(buf_store("buffer_store_dwordx4", pk, vL16 if qb < 4 else vT2, sWS, sXo if ks else sWQo, 1024 * qb if qb < 4 else 0, P["opol"]))
        if P["tail"]: self.tail()
        if P["stamps"]:
            A(wait_vm(0), self.stamp(), raw("s_memtime s[96:97]"), raw("s_waitcnt lgkmcnt(0)", "wait"), salu("s_sub_u32", S(96), S(96), S(98)))
            A(salu("s_lshl_b32", sT, S(2), 2), salu("s_add_u32", sT, sT, sW), salu("s_lshl_b32", sT, sT, 7), salu("s_add_u32", sT, sT, STAMP_OFF), valu("v_mov_b32", vT, 0))
            for i in range(self.nst):
                A(valu("v_mov_b32", vT2, sST(i)), buf_store("buffer_store_dword", vT2, vT, sWS, sT, 4 * i))
            A(valu("v_mov_b32", vT2, S(96)), buf_store("buffer_store_dword", vT2, vT, sWS, sT, 4 * 31))
            if P.get("probe") is not None:
                A(salu("s_cmp_eq_u32", None, S(2), P.get("pwg", 101)), raw("s_cbranch_scc0 L1_done", "branch"), salu("s_cmp_eq_u32", None, sW, 0), raw("s_cbranch_scc0 L1_done", "branch"))
                A(salu("s_sub_u32", sT, sST(P["probe"]), sST(0)), salu("s_min_u32", sT, sT, 20000), salu("s_mul_i32", sT, sT, 4), salu("s_add_u32", sT, sT, sST(self.nst - 1)))
                A(label("Lspin"), raw("s_memrealtime s[96:97]"), raw("s_waitcnt lgkmcnt(0)"), salu("s_sub_u32", sT2, S(96), sT), salu("s_cmp_lt_i32", None, sT2, 0), raw("s_cbranch_scc1 Lspin", "branch"))
        A(label("L1_done"), raw("s_endpgm"))

    def tail(self):
        A, P = self.A, self.P
        g, r, cc, q, t, b0 = (vTMP[i] for i in range(6))
        A(valu("v_lshrrev_b32", g, 4, vL), valu("v_bfe_u32", r, vL, 2, 2), valu("v_and_b32", cc, 3, vL), valu("v_and_b32", q, 15, vL))
        A(valu("v_lshl_add_u32", b0, g, 2, r), valu("v_mul_u32_u24", b0, 160, b0), valu("v_lshl_add_u32", b0, cc, 3, b0))
        A(salu("s_mul_i32", sT, sKG, 26 * UNIT + 128), salu("s_mul_i32", sT2, sKG, 10 * UNIT + 128), salu("s_add_u32", sT2, sT2, 6 * UNIT))
        A(salu("s_mul_i32", sT3, sKG, -64), salu("s_add_u32", sT3, sT3, 32))
        A(valu("v_add_u32", vAR[0][0], sT, b0), valu("v_add_u32", vAR[1][0], sT2, b0))
        for aa in range(1, 5): A(valu("v_add_u32", vAR[0][aa], sT3, vAR[0][aa - 1]), valu("v_add_u32", vAR[1][aa], sT3, vAR[1][aa - 1]))
        A(salu("s_lshl_b32", sT, sKG, 12), salu("s_mul_i32", sT3, sKG, -2048), salu("s_add_u32", sT3, sT3, 1024), valu("v_add_u32", vBO[0], sT, vL16))
        for ii in range(1, 5): A(valu("v_add_u32", vBO[ii], sT3, vBO[ii - 1]))
        A(salu("s_lshl_b32", sT, sB, 5), salu("s_lshl_b32", sT2, sHG, 3), salu("s_add_u32", sT, sT, sT2), salu("s_lshl_b32", sT2, sKG, 2), salu("s_add_u32", sT, sT, sT2))
        A(salu("s_lshl_b32", sT, sT, 7), salu("s_add_u32", sKVo, sT, FL), valu("v_lshlrev_b32", t, 7, cc))
        A(wait_vm(0), barrier(), self.stamp(), self.flag_store(1))
        for i in range(3, 8): A(flat(self.wo_unit(i)))
        A(valu("v_cmp_gt_u32", VCC, 32, vCNT), raw("s_cbranch_vccz Lcnt_ok", "branch", rd=VCC.regs()))
        A(valu("v_mov_b32", vZ, 0), salu("s_lshl_b32", sT, sB, 2), self.poll("Lpoll0", sDBG, vZ, sT, 32, "v_cmp_gt_u32"), label("Lcnt_ok"))
        A(self.poll("Lpoll1", sWS, t, sKVo, 1, "v_cmp_gt_u32"), self.stamp())
        def breq(u):
            pre = []
            if u % 4 == 0:
                pre = [salu("s_add_u32", sT, sJ, u >> 2), salu("s_and_b32", sT, sT, 3), salu("s_lshl_b32", sT2, sKG, 2), salu("s_add_u32", sT, sT, sT2), salu("s_lshl_b32", sT2, sHG, 3), salu("s_add_u32", sT, sT, sT2),
                       salu("s_lshl_b32", sT2, sB, 5), salu("s_add_u32", sT, sT, sT2), salu("s_mul_i32", sT, sT, 40960), salu("s_mul_i32", sT2, sRG, 5120), salu("s_add_u32", sBo, sT, sT2)]
            else: pre = [salu("s_add_u32", sBo, sBo, 10240)]
            g_ = []
            for ii in range(5):
                g_.append(pre + [buf_load("buffer_load_dwordx4", gB(u, ii), vBO[ii], sWS, sBo, 0, "sc1")]); pre = []
            return g_
        for u in range(3): A(flat(breq(u)))
        frags = [(u, aa) for u in range(16) for aa in range(5)]
        ring = {fr: aRING[i % 4] for i, fr in enumerate(frags)}
        slots = [(u, aa, ii) for (u, aa) in frags for ii in range(5)]
        gaps = {sl: [] for sl in slots}; idx = {sl: k for k, sl in enumerate(slots)}
        head = []
        for i, (u, aa) in enumerate(frags):
            se = 0 if u < 6 else 1; off = (u if u < 6 else u - 6) * UNIT
            rd = [ds_read("ds_read_b64_tr_b16", ring[(u, aa)].sub(2 * tt, 2), vAR[se][aa], off + tt * 2560) for tt in range(2)]
            if i < 2: head += rd
            else:
                base = idx[frags[i - 2] + (0,)]
                if (u, aa) == (6, 0): gaps[slots[base + 1]] += [wait_lgkm(0), barrier()]
                gaps[slots[base + 1]].append(rd[0]); gaps[slots[base + 3]].append(rd[1])
        for u in range(13):
            for k, grp in enumerate(breq(u + 3)): gaps[slots[idx[(u, 0, 0)] + 5 * k + 2]] += grp
        A(head)
        for (u, aa, ii) in slots:
            d = gACC(5 * ii + aa)
            A(mfma16(d, ring[(u, aa)], gB(u, ii), 0 if u == 0 else d), gaps[(u, aa, ii)])
        A(self.stamp())
        wa, ra = vTMP[6], vTMP[7]
        def exc(dst, w_): return [salu("s_and_b32", sT, w_, 1), salu("s_mul_i32", sT, sT, 13312), salu("s_lshr_b32", sT2, w_, 1), salu("s_mul_i32", sT2, sT2, 26 * UNIT), salu("s_add_u32", sT, sT, sT2), valu("v_add_u32", dst, sT, vL16)]
        A(exc(wa, sW), salu("s_xor_b32", sT3, sW, 2), exc(ra, sT3))
        A(valu("v_lshrrev_b32", g, 4, vL), valu("v_and_b32", cc, 3, vL), valu("v_and_b32", q, 15, vL))
        for s_ in (15, 20, 16, 21, 12, 17, 22, 13, 18, 23, 14, 19, 24): A(ds_write("ds_write_b128", wa, gACC(s_), (s_ - 12) * 1024))
        A(salu("s_lshl_b32", sT, sB, 3), salu("s_add_u32", sT, sT, sJ), salu("s_mul_i32", sWQo, sT, 4 * 26624), salu("s_add_u32", sWQo, sWQo, PB))
        A(salu("s_mul_i32", sT, sHG, 26624), salu("s_add_u32", sXo, sWQo, sT), salu("s_lshl_b32", sT, sRG, 10), salu("s_add_u32", sT3, sXo, sT), salu("s_add_u32", sT3, sT3, 24576))
        A(salu("s_lshl_b32", sT, sKG, 30), valu("v_add_u32", vT3, sT, vL16))
        A(salu("s_mul_i32", sT, sRG, 12288), salu("s_mul_i32", sT2, sKG, 6144), salu("s_add_u32", sT, sT, sT2), salu("s_add_u32", sXo, sXo, sT), valu("v_add_u32", vT2, 4096, vL16))
        A(wait_lgkm(0), barrier())
        RR = lambda s_: V(140 + 4 * s_, 4)
        for s_ in range(13): A(ds_read("ds_read_b128", RR(s_), ra, (12 - s_) * 1024))
        for p in range(7):
            pk = V(192 + 4 * (p & 1), 4)
            for z in range(2 if p < 6 else 1):
                s_ = 2 * p + z
                A([valu("v_pk_add_f32", gACC(s_).sub(2 * e, 2), gACC(s_).sub(2 * e, 2), RR(s_).sub(2 * e, 2)) for e in range(2)])
                A([valu("v_cvt_pk_bf16_f32", pk[2 * z + e], gACC(s_)[2 * e], gACC(s_)[2 * e + 1]) for e in range(2)])
            if p < 6: A(buf_store("buffer_store_dwordx4", pk, vL16 if p < 4 else vT2, sWS, sXo, 1024 * (p & 3), "sc1"))
            else: A(buf_store("buffer_store_dwordx4", pk, vT3, sWS, sT3, 0, "sc1"))
        oa = [vTMP[8], vTMP[9]]; it, m_, i_ = vTMP[10], vTMP[11], vTMP[12]
        sIT = [sWQw, sM0x]
        for k in range(2):
            A(salu("s_lshl_b32", sT, sHG, 2), salu("s_add_u32", sT, sT, sW), salu("s_add_u32", sT, sT, 16 * k))
            A(salu("s_lshl_b32", sIT[k], sT, 10), salu("s_add_u32", sIT[k], sIT[k], sWQo))
            A(salu("s_mul_i32", sT3, sT, 43), salu("s_lshr_b32", sT3, sT3, 8), salu("s_mul_i32", sBo, sT3, 6), salu("s_sub_u32", sBo, sT, sBo), salu("s_lshr_b32", sT2, sT3, 1), salu("s_and_b32", sT3, sT3, 1))
            if k == 1:
                A(salu("s_cmp_ge_u32", None, sT, 24), salu("s_cselect_b32", sT2, sBo, sT2), salu("s_cselect_b32", sBo, 6, sBo))
            A(valu("v_and_b32", m_, 1, g), salu("s_lshl_b32", sBo, sBo, 1), valu("v_add_u32", m_, sBo, m_))
            if k == 1: A(valu("v_cmp_lt_u32", VCC, 12, m_))
            A(salu("s_mul_i32", sBo, sT3, 24), salu("s_mul_i32", sT3, sT3, -2), salu("s_add_u32", sT3, sT3, 1), valu("v_mul_i32_i24", m_, sT3, m_), valu("v_add_u32", m_, sBo, m_))
            A(valu("v_mul_u32_u24", i_, 52, m_), valu("v_lshrrev_b32", i_, 8, i_), valu("v_mul_u32_u24", it, 5, i_), valu("v_sub_u32", m_, m_, it))
            A(valu("v_lshl_add_u32", i_, i_, 4, q), salu("s_mul_i32", sT2, sT2, 80), salu("s_mul_i32", sBo, sB, 160), salu("s_add_u32", sT2, sT2, sBo), valu("v_add_u32", i_, sT2, i_))
            A(valu("v_mul_u32_u24", i_, 1280, i_), valu("v_lshl_add_u32", i_, m_, 5, i_), valu("v_lshrrev_b32", it, 1, g), valu("v_lshl_add_u32", i_, it, 4, i_), salu("s_mul_i32", sBo, sJ, 160), valu("v_add_u32", oa[k], sBo, i_))
            if k == 1:
                A(valu("v_mov_b32", it, 1 << 30), valu("v_cndmask_b32", oa[1], oa[1], it, VCC))
                A(salu("s_cmp_ge_u32", None, sT, 26), salu("s_cselect_b32", sT, 1 << 30, 0), valu("v_add_u32", vT4, sT, vL16), valu("v_add_u32", oa[1], sT, oa[1]))
        A(salu("s_lshl_b32", sT, sB, 5), salu("s_add_u32", sT, sT, sJ), salu("s_lshl_b32", sT, sT, 7), salu("s_add_u32", sKVo, sT, FL), valu("v_lshlrev_b32", t, 10, cc))
        A(wait_vm(0), barrier(), self.stamp(), self.flag_store(2))
        A(self.poll("Lpoll2", sWS, t, sKVo, 2, "v_cmp_gt_u32"), self.stamp())
        src = lambda k, h_: V(40 + 16 * k + 4 * h_, 4)
        for k in range(2):
            for h_ in range(4):
                A(buf_load("buffer_load_dwordx4", src(k, h_), vT4 if k else vL16, sWS, sIT[k], 0, "sc1"))
                if h_ < 3: A(salu("s_add_u32", sIT[k], sIT[k], 26624))
        A(salu("s_mov_b32", sT, "0xffff0000"))
        for k in range(2):
            acc = V(80 + 24 * k, 8); tmp = V(88 + 24 * k, 8); pk = V(96 + 24 * k, 4)
            for h_ in range(4):
                d = acc if h_ == 0 else tmp
                for e in range(4): A(valu("v_lshlrev_b32", d[2 * e], 16, src(k, h_)[e]), valu("v_and_b32", d[2 * e + 1], sT, src(k, h_)[e]))
                if h_: A([valu("v_pk_add_f32", acc.sub(2 * e, 2), acc.sub(2 * e, 2), tmp.sub(2 * e, 2)) for e in range(4)])
            A([valu("v_cvt_pk_bf16_f32", pk[e], acc[2 * e], acc[2 * e + 1]) for e in range(4)])
            A(valu("v_permlane16_swap_b32", pk[0], pk[2]), valu("v_permlane16_swap_b32", pk[1], pk[3]))
            A(buf_store("buffer_store_dwordx4", pk, oa[k], sOUT, 0, 0, P["outpol"]))

    def build(self):
        self.prologue(); self.qproj(); self.q_finish(); self.attention(); self.epilogue()
        out = finish(self.p, True)
        out += self.stubs
        if self.stubs:
            for a in range(2): out += finish(self.slow_path(a))
        return out

def main():
    P = dict(DEF)
    if len(sys.argv) > 2: P.update(json.loads(sys.argv[2]))
    out = sys.argv[1]
    hdr = open("standalone__gqa_block_cached__near_ridge.s.ref").read().split("; Override")[0] if P.get("hdr", 1) else ""
    s = hdr
    name = "standalone__gqa_block_cached__near_ridge_kernel"
    s += f"; @launch grid=(256,1,1) block=(256,1,1) lds={LDS1}\n"
    s += '.amdgcn_target "amdgcn-amd-amdhsa--gfx950"\n'
    s += kernel_header(name) + text(K1(P).build())
    s += kernel_desc(name, 512, 256)
    open(out, "w").write(s)

if __name__ == "__main__":
    main()
```

```python
import sys, json, math, struct
from asmlib import *

def fbits(x): return "0x%08x" % struct.unpack("<I", struct.pack("<f", x))[0]
K_ = 1024
DEF = dict(cpf=16, q32=0, w2=5, npre=4, kvpol="nt", qpol="", stamps=0, rot=1, opol="sc1", wpol="", outpol="", tail=1, wtouch=13, wo1=[14, 14, 15], thr=65536.0, x="",
           plan={"K0": 6, "K1": 7, "K2": 8, "V0": 8, "K3": 9})

KS = [16 * K_ * i for i in range(4)]
VS = [64 * K_ + 16 * K_ * i for i in range(4)]
STG = {1: 52 * K_, 2: 88 * K_, 0: 124 * K_}
QX = 84 * K_
MX = 32 * K_
MLN = 30720
MLL = 131072
UNIT = 5120
EXC = [0, 13312, 26 * UNIT, 26 * UNIT + 13312]
PB = 20 << 20
FL = 28 << 20
LDS1 = 163840
STAMP_OFF = 16 << 20

sX, sWQ, sK, sV, sWS = S(20, 4), S(24, 4), S(28, 4), S(32, 4), S(36, 4)
sB, sH, sW, sROT = S(40), S(41), S(42), S(43)
sWQo, sXo, sKVo, sW4K, sT, sTHR, sT2, sT3 = S(44), S(45), S(46), S(47), S(48), S(49), S(50), S(51)
sRET = S(52, 2); sC2 = S(54, 2); sWQw, sM0x, sRG, sKG = S(56), S(57), S(58), S(59)
sST = lambda i: S(60 + i)
sSTT = S(96, 2)
vTID, vL, vL16, vT = V(0), V(1), V(2), V(3)
vKD = [V(4 + j) for j in range(4)]; vVD = [V(8), V(9)]
vKR = [V(10 + j) for j in range(4)]; vVR = [V(14 + j) for j in range(8)]
vLs = [V(22 + j) for j in range(5)]; vBS = [V(27 + j) for j in range(5)]
vE = [V(32 + j) for j in range(4)]; vT1, vT2, vT3, vT4 = V(36), V(37), V(38), V(39)
vS = [V(40, 40), V(80, 40)]; vP = [V(120, 20), V(140, 20)]; vNM = V(160, 20)
vACC = lambda a, qb: V(40 + 4 * (5 * a + qb), 4)
vWD = [V(180 + j) for j in range(4)]; vXD = [V(184 + j) for j in range(5)]
vQA = [[V(190 + j) for j in range(4)], [V(196 + j) for j in range(4)]]
vQB = [[V(194), V(195)], [V(200), V(201)]]
vQB32 = [[[V(120 + 8 * se + 4 * u + k) for k in range(4)] for u in range(2)] for se in range(2)]
aFA32 = lambda p, a: Ac(20 * p + 4 * a, 4)
aFB32 = lambda p, u: Ac(20 * p + 8 + 4 * u, 4)
vACC32 = lambda i: V(40 + 16 * i, 16)
aSTG = {n: Ac(72 + 16 * i, 16) for i, n in enumerate(("V0", "K3", "V1", "V2", "V3"))}
vTMP = V(204, 20)
vWO = [V(224 + j) for j in range(5)]; vCNT = V(229)
vAR = [[V(230 + j) for j in range(5)], [V(235 + j) for j in range(5)]]; vBO = [V(240 + j) for j in range(5)]
vU = [V(246, 4), V(250, 4)]; vZ = V(254)
sWO, sDBG, sOUT = S(80, 4), S(84, 4), S(88, 4)
sJ, sHG, sSPIN, sBo = S(92), S(93), S(94), S(95)
sU0, sKB, sOB = S(3), S(100), S(101)
gACC = lambda s_: V(40 + 4 * s_, 4) if s_ < 20 else V(160 + 4 * (s_ - 20), 4)
NBR = 5
gB = lambda v, ii: Ac(20 * (v % NBR) + 4 * ii, 4)
sU1 = S(4); sWOo = S(5)
aO = lambda j, qb: Ac(4 * (5 * j + qb), 4)
aRING = [Ac(160 + 4 * i, 4) for i in range(4)]
aQ = lambda qb, ks: Ac(176 + 4 * (4 * qb + ks), 4)
aFA = lambda p, a: Ac(36 * p + 4 * a, 4)
aFB = lambda p, qb: Ac(36 * p + 16 + 4 * qb, 4)
flat = lambda g: [i for x in g for i in x]

class K1:
    def __init__(self, P):
        self.P = P; self.p = []; self.nst = 0; self.stubs = []
        self.so = [V(180 + 2 * qb, 2) for qb in range(5)]; self.sp = [V(190 + 2 * qb, 2) for qb in range(5)]
    def A(self, *x):
        for i in x:
            if isinstance(i, list): self.p += i
            else: self.p.append(i)
    def stamp(self):
        if self.P["stamps"]:
            i = self.nst; self.nst += 1
            op = 's_memrealtime' if self.P['stamps'] == 1 else 's_memtime'
            return [raw(f"{op} {sSTT} ; stamp"), raw("s_waitcnt lgkmcnt(0)", "wait_lg0"), salu("s_mov_b32", sST(i), sSTT[0])]
        return []

    def prologue(self):
        A, P = self.A, self.P
        q32 = P.get("q32", 1)
        A(raw("s_cmp_ge_u32 s2, 256"), raw("s_cbranch_scc1 L1_done", "branch"))
        A(self.stamp())
        if P["stamps"]: A(raw("s_memtime s[98:99]"))
        A(raw("s_load_dwordx8 s[4:11], s[0:1], 0"))
        A(valu("v_lshrrev_b32", vT, 6, vTID), valu("v_and_b32", vL, 63, vTID), valu("v_readfirstlane_b32", sW, vT))
        A(salu("s_and_b32", sT, S(2), 1), salu("s_lshr_b32", sT2, S(2), 6), salu("s_lshl2_add_u32", sB, sT, sT2))
        A(salu("s_bfe_u32", sHG, S(2), (2 << 16) | 1), salu("s_bfe_u32", sJ, S(2), (3 << 16) | 3), salu("s_lshl3_add_u32", sH, sHG, sJ))
        if P.get("planA"):
            A(salu("s_add_u32", sT, sT2, sJ), salu("s_bitcmp1_b32", None, sT, 0), raw("s_cbranch_scc0 LgrpB", "branch"))
    def prologue2(self, kvfirst=False):
        A, P = self.A, self.P
        q32 = P.get("q32", 1)
        if P["rot"] == 4:
            A(salu("s_and_b32", sT2, sT2, 2), salu("s_lshr_b32", sT, sJ, 1), salu("s_add_u32", sROT, sT2, sT), salu("s_mul_i32", sROT, sROT, 5), salu("s_lshr_b32", sROT, sROT, 1), salu("s_cmp_ge_u32", None, sROT, 10),
              salu("s_cselect_b32", sT, 10, 0), salu("s_sub_u32", sROT, sROT, sT))
        elif P["rot"] == 1:
            A(salu("s_lshl1_add_u32", sROT, sT2, sJ), salu("s_mul_i32", sROT, sROT, 5), salu("s_lshr_b32", sROT, sROT, 2), salu("s_cmp_ge_u32", None, sROT, 10),
              salu("s_cselect_b32", sT, 10, 0), salu("s_sub_u32", sROT, sROT, sT))
        elif P["rot"] == 2:
            A(salu("s_add_u32", sROT, sT2, sJ), salu("s_and_b32", sROT, sROT, 3), salu("s_mul_i32", sROT, sROT, 5), salu("s_lshr_b32", sROT, sROT, 1))
        elif P["rot"] == 3:
            A(salu("s_add_u32", sROT, sT2, sJ), salu("s_and_b32", sROT, sROT, 1), salu("s_mul_i32", sROT, sROT, 5))
        else:
            A(salu("s_mov_b32", sROT, 0))
        A(salu("s_lshl_b32", sW4K, sW, 12), salu("s_lshl_b32", sWQw, sW, 17), salu("s_mul_i32", sM0x, sW, 5120))
        row4, c16 = vT1, vT2
        A(valu("v_lshrrev_b32", row4, 4, vL), valu("v_and_b32", c16, 15, vL))
        L = []; B = lambda *x: L.extend(flat([i if isinstance(i, list) else [i] for i in x]))
        B(salu("s_lshl_b32", sT3, sB, 5), salu("s_add_u32", sT3, sT3, sH), salu("s_lshl_b32", sT3, sT3, 18))
        if P.get("hot"): B(salu("s_mov_b32", sT3, 0))
        B(valu("v_lshlrev_b32", vT, 1, row4), valu("v_xor_b32", vT, vT, c16), valu("v_lshlrev_b32", vT, 4, vT), valu("v_lshl_add_u32", vVD[0], row4, 8, vT))
        B(valu("v_xor_b32", vVD[1], 128, vVD[0]), valu("v_lshlrev_b32", vL16, 4, vL))
        for j in range(4):
            B(valu("v_add_u32", vT, 4 * j, row4), valu("v_xor_b32", vT, vT, c16), valu("v_lshlrev_b32", vT, 4, vT), valu("v_lshl_add_u32", vKD[j], row4, 8, vT))
        if kvfirst: B(raw("s_waitcnt lgkmcnt(0)", "wait"))
        B(salu("s_add_u32", sK[0], S(6), sT3), salu("s_addc_u32", sK[1], S(7), 0), salu("s_mov_b32", sK[2], 262144), salu("s_mov_b32", sK[3], "0x20000"))
        B(salu("s_add_u32", sV[0], S(8), sT3), salu("s_addc_u32", sV[1], S(9), 0), salu("s_mov_b32", sV[2], 262144), salu("s_mov_b32", sV[3], "0x20000"))
        KVL = L
        if kvfirst: A(KVL, flat([flat(self.kv_req(n)) for n in self.plan if self.plan[n] == "first"]))
        A(valu("v_lshlrev_b32", vT, 2 if q32 else 1, row4), valu("v_xor_b32", vT, vT, c16), valu("v_lshlrev_b32", vT, 4, vT), valu("v_lshl_add_u32", vWD[0], row4, 13, vT))
        if q32:
            for j in range(1, 4): A(valu("v_add_u32", vWD[j], j * (32768 - 1024), vWD[0]))
        else:
            A(valu("v_add_u32", vWD[1], 32768 - 1024, vWD[0]), valu("v_xor_b32", vWD[2], 128, vWD[0]))
            A(valu("v_add_u32", vWD[3], 3 * (32768 - 1024), vWD[2]), valu("v_add_u32", vWD[2], 2 * (32768 - 1024), vWD[2]))
        A(salu("s_mov_b32", sWQ[3], "0x20000"), salu("s_lshl_b32", sT, sH, 8), salu("s_sub_u32", sWQ[2], 5242880, sT))
        if P.get("pst"): A(self.stamp())
        A(raw("s_waitcnt lgkmcnt(0)", "wait"))
        A(salu("s_add_u32", sWQ[0], S(10), sT), salu("s_addc_u32", sWQ[1], S(11), 0))
        c0 = self.chunk_dma(0)
        A(flat(c0[:4]))
        row8, c8 = vT3, vT4
        A(valu("v_lshrrev_b32", row8, 3, vL), valu("v_and_b32", c8, 7, vL), salu("s_and_b32", sRG, sW, 1), salu("s_lshl_b32", sT2, sRG, 6), salu("s_mul_i32", sT, sW, 5 * 8 * 1280))
        A(valu("v_lshrrev_b32", vT, 1, row8), valu("v_xor_b32", vT, vT, c8), valu("v_lshlrev_b32", vT, 4, vT), valu("v_xor_b32", vT, sT2, vT))
        A(valu("v_mul_u32_u24", row8, 1280, row8), valu("v_add_u32", row8, sT, row8), valu("v_add_u32", vXD[0], row8, vT), valu("v_xor_b32", vT, 64, vT), valu("v_add_u32", vXD[1], row8, vT))
        A(valu("v_add_u32", vXD[2], 2 * (10240 - 1024), vXD[0]), valu("v_add_u32", vXD[3], 3 * (10240 - 1024), vXD[1]), valu("v_add_u32", vXD[4], 4 * 10240, vXD[0]), valu("v_add_u32", vXD[1], 10240 - 1024, vXD[1]))
        A(salu("s_mul_i32", sT, sB, 204800), salu("s_add_u32", sX[0], S(4), sT), salu("s_addc_u32", sX[1], S(5), 0), salu("s_mov_b32", sX[2], 204800), salu("s_mov_b32", sX[3], "0x20000"))
        A(flat(c0[4:]))
        if P.get("pst"): A(self.stamp())
        A(raw("s_load_dwordx8 s[12:19], s[0:1], 32"))
        if P.get("qtouch"):
            d = [V(240 + i) for i in range(3)]
            A(salu("s_lshr_b32", sT2, S(2), 6), salu("s_lshl2_add_u32", sT2, sT2, sW), salu("s_mul_i32", sT2, sT2, 40 * 8192))
            A(valu("v_lshrrev_b32", vT, 1, vL), valu("v_lshlrev_b32", vT, 13, vT), valu("v_and_b32", vZ, 1, vL), valu("v_lshl_add_u32", vT, vZ, 7, vT))
            A(buf_load("buffer_load_dword", d[0], vT, sWQ, sT2, 0, P["qpol"]))
            A(salu("s_lshl2_add_u32", sT, sJ, sW), salu("s_mul_i32", sT, sT, 6400), valu("v_min_u32", vZ, 49, vL), valu("v_lshlrev_b32", vZ, 7, vZ))
            A(buf_load("buffer_load_dword", d[1], vZ, sX, sT, 0, P["qpol"]))
            A(valu("v_and_b32", vT, 0xefff, vT), salu("s_add_u32", sT2, sT2, 32 * 8192))
            A(buf_load("buffer_load_dword", d[2], vT, sWQ, sT2, 0, P["qpol"]))
        if P.get("cpf"):
            n = P["cpf"]
            A(raw("s_getpc_b64 s[76:77]", wr=S(76, 2).regs()), label(f"Lpc{int(kvfirst)}"), salu("s_and_b32", S(76), S(76), "0xffffff80"), salu("s_mov_b32", S(78), f"L1_done-Lpc{int(kvfirst)}"), salu("s_mov_b32", S(79), "0x20000"))
            A(salu("s_lshr_b32", sT, S(2), 3), salu("s_and_b32", sT, sT, 512 // (4 * n) - 1), salu("s_lshl_b32", sT, sT, 2), salu("s_add_u32", sT, sT, sW), salu("s_mul_i32", sT, sT, n * 128))
            A(valu("v_lshlrev_b32", vZ, 7, vL), valu("v_cmp_gt_u32", VCC, n, vL), valu("v_mov_b32", vCNT, 1 << 30), valu("v_cndmask_b32", vZ, vCNT, vZ, VCC))
            A(buf_load("buffer_load_dword", vCNT, vZ, S(76, 4), sT))
        A(salu("s_lshr_b32", sKG, sW, 1))
        g, r, cc, q, t, f, b0, hh = (vTMP[i] for i in range(8))
        A(valu("v_lshrrev_b32", g, 4, vL), valu("v_bfe_u32", r, vL, 2, 2), valu("v_and_b32", cc, 3, vL), valu("v_and_b32", q, 15, vL))
        A(valu("v_and_b32", f, 1, g), valu("v_lshl_add_u32", f, f, 2, r))
        if q32:
            A(valu("v_lshrrev_b32", hh, 5, vL), valu("v_lshl_add_u32", b0, hh, 3, r), valu("v_lshlrev_b32", b0, 8, b0), valu("v_lshl_add_u32", b0, cc, 3, b0))
            A(valu("v_and_b32", t, 1, g), valu("v_lshl_add_u32", b0, t, 5, b0), valu("v_xor_b32", t, sW, r), valu("v_lshl_add_u32", b0, t, 6, b0))
            for a in range(2):
                A(valu("v_xor_b32", t, 64 * a, b0), valu("v_add_u32", vQA[0][a], STG[1], t), valu("v_add_u32", vQA[1][a], STG[0], t))
            A(valu("v_bfe_u32", t, vL, 1, 3), valu("v_xor_b32", t, t, hh), valu("v_lshlrev_b32", t, 4, t), valu("v_and_b32", b0, 31, vL), valu("v_lshl_add_u32", b0, b0, 7, t))
            A(salu("s_lshl_b32", sT, sRG, 13), salu("s_add_u32", sT2, sT, STG[1] + 16384), salu("s_add_u32", sT3, sT, STG[0] + 16384))
            for s_ in range(4):
                A(valu("v_xor_b32", t, 32 * s_, b0), valu("v_add_u32", vQB32[0][0][s_], sT2, t), valu("v_add_u32", vQB32[1][0][s_], sT3, t))
                A(valu("v_add_u32", vQB32[0][1][s_], STG[1] + 32768, t), valu("v_add_u32", vQB32[1][1][s_], STG[0] + 32768, t))
        else:
            A(valu("v_lshl_add_u32", b0, g, 3, r), valu("v_lshlrev_b32", b0, 8, b0), valu("v_lshl_add_u32", b0, cc, 3, b0))
            A(salu("s_lshl_b32", sT, sKG, 2), valu("v_xor_b32", t, sT, f), valu("v_lshl_add_u32", b0, t, 5, b0))
            for a in range(4):
                A(valu("v_xor_b32", t, 32 * a, b0), valu("v_add_u32", vQA[0][a], STG[1], t), valu("v_add_u32", vQA[1][a], STG[0], t))
            A(valu("v_lshrrev_b32", t, 1, q), valu("v_xor_b32", t, t, g), valu("v_lshlrev_b32", t, 4, t), valu("v_lshl_add_u32", b0, q, 7, t))
            A(salu("s_mul_i32", sT, sRG, 10240), salu("s_add_u32", sT2, sT, STG[1] + 16384), salu("s_add_u32", sT3, sT, STG[0] + 16384))
            A(valu("v_xor_b32", t, 64, b0), valu("v_add_u32", vQB[0][0], sT2, b0), valu("v_add_u32", vQB[0][1], sT2, t), valu("v_add_u32", vQB[1][0], sT3, b0), valu("v_add_u32", vQB[1][1], sT3, t))
        A(flat(self.chunk_dma(1)))
        if not kvfirst: A(KVL)
        L = []
        c = fbits(math.log2(math.e) / math.sqrt(128.0))
        B(salu("s_mov_b32", sTHR, fbits(P["thr"])), salu("s_mov_b32", sC2[0], c), salu("s_mov_b32", sC2[1], c))
        B(salu("s_lshl_b32", sT, sKG, 13))
        B(valu("v_xor_b32", t, q, g), valu("v_lshlrev_b32", t, 4, t), valu("v_lshl_add_u32", b0, q, 8, t), valu("v_add_u32", b0, sT, b0))
        for ks in range(4): B(valu("v_xor_b32", vKR[ks], 64 * ks, b0))
        B(valu("v_lshl_add_u32", b0, g, 2, r), valu("v_lshlrev_b32", b0, 8, b0), valu("v_lshl_add_u32", b0, cc, 3, b0), salu("s_add_u32", sT, sT, VS[0]), valu("v_add_u32", b0, sT, b0))
        B(salu("s_lshl_b32", sT, sKG, 2), valu("v_xor_b32", t, sT, f), valu("v_lshl_add_u32", b0, t, 5, b0))
        for j in range(8): B(valu("v_xor_b32", vVR[j], 32 * j, b0))
        for qb in range(5): B(valu("v_mov_b32", vLs[qb], 0))
        B(raw("s_waitcnt lgkmcnt(0)", "wait_lg0"))
        B(salu("s_mov_b32", sWS[0], S(18)), salu("s_mov_b32", sWS[1], S(19)), salu("s_mov_b32", sWS[2], 32 << 20), salu("s_mov_b32", sWS[3], "0x20000"))
        if P["tail"]:
            B(salu("s_lshl_b32", sU0, sJ, 2), salu("s_lshl1_add_u32", sU1, sKG, sU0), salu("s_mul_i32", sT, sKG, 14), salu("s_add_u32", sU0, sU0, sT), salu("s_add_u32", sU0, sU0, 2))
            B(salu("s_lshl_b32", sKB, sHG, 5))
            B(salu("s_lshl_b32", sOB, sB, 7), salu("s_add_u32", sOB, sOB, sKB), salu("s_mul_i32", sOB, sOB, 10240), salu("s_mul_i32", sT, sRG, 5120), salu("s_add_u32", sOB, sOB, sT))
            B(salu("s_mul_i32", sT, sJ, 160), salu("s_add_u32", sWO[0], S(12), sT), salu("s_addc_u32", sWO[1], S(13), 0), salu("s_sub_u32", sWO[2], 5242880, sT), salu("s_mov_b32", sWO[3], "0x20000"))
            B(salu("s_mov_b32", sDBG[0], S(16)), salu("s_mov_b32", sDBG[1], S(17)), salu("s_mov_b32", sDBG[2], 256), salu("s_mov_b32", sDBG[3], "0x20000"))
            B(salu("s_mov_b32", sOUT[0], S(14)), salu("s_mov_b32", sOUT[1], S(15)), salu("s_mov_b32", sOUT[2], 1638400), salu("s_mov_b32", sOUT[3], "0x20000"))
            for m in range(5):
                B(valu("v_add_u32", t, 64 * m, vL), valu("v_mul_u32_u24", b0, 6554, t), valu("v_lshrrev_b32", b0, 16, b0), valu("v_mul_u32_u24", vZ, 1280 - 160, b0))
                B(valu("v_lshl_add_u32", vWO[m], t, 4, vZ))
                if 0 < m < 4: B(valu("v_subrev_u32", vWO[m], 1024 * m, vWO[m]))
        A(L)

    def one_lane(self, dst):
        return [valu("v_min_u32", dst, 1, vTID), valu("v_lshlrev_b32", dst, 30, dst)]
    def flag_store(self, val):
        o = self.one_lane(vZ) + [valu("v_mov_b32", vT, val), salu("s_lshl_b32", sT, sB, 5), salu("s_add_u32", sT, sT, sH), salu("s_lshl_b32", sT, sT, 7), salu("s_add_u32", sT, sT, FL)]
        return o + [buf_store("buffer_store_dword", vT, vZ, sWS, sT, 0, "sc1", "flag")]
    def wo_unit(self, i):
        pol = self.P["wpol"]; g = []
        pre = [salu("s_add_u32", sT2, sRG, 2 * i), salu("s_add_u32", sT3, sT2, sU0 if i else sU1), salu("s_and_b32", sT3, sT3, 31), salu("s_add_u32", sT3, sT3, sKB), salu("s_mul_i32", sWOo, sT3, 32 * 1280),
               salu("s_mul_i32", sT3, sKG, 26 if i < 3 else 10), salu("s_add_u32", sT2, sT2, sT3), salu("s_mul_i32", sT2, sT2, UNIT), salu("s_mov_b32", M0, sT2)]
        for m in range(5):
            if m == 4: pre = [salu("s_add_u32", M0, sT2, 4096), nop(0)]
            g.append(pre + [buf_dma(vWO[m], sWO, sWOo, 1024 * m if m < 4 else 0, pol, ("wo", i))]); pre = []
        return g
    def wo_touch(self):
        o = [salu("s_and_b32", sT, sB, 3), salu("s_lshl_b32", sT, sT, 3), salu("s_add_u32", sT, sT, sJ), salu("s_lshl_b32", sT2, sHG, 5), salu("s_add_u32", sT, sT, sT2),
             salu("s_lshl_b32", sT, sT, 2), salu("s_add_u32", sT, sT, sW), salu("s_mul_i32", sT, sT, 10240), salu("s_mul_i32", sT2, sJ, 160), salu("s_sub_u32", sT, sT, sT2),
             valu("v_lshlrev_b32", vZ, 7, vL)]
        o += [salu("s_max_i32", sT, sT, 0), buf_load("buffer_load_dword", vBO[0], vZ, sWO, sT, 0, self.P["wpol"])]
        o2 = [valu("v_and_b32", vZ, 15, vL), valu("v_lshlrev_b32", vZ, 7, vZ), salu("s_add_u32", sT, sT, 8192), buf_load("buffer_load_dword", vBO[1], vZ, sWO, sT, 0, self.P["wpol"])]
        return [o, o2]
    def poll(self, name, srd, addr, soff, val, cmp, track=True):
        return [salu("s_mov_b32", sSPIN, 1 << 18), label(name), (buf_load("buffer_load_dword", vT1, addr, srd, soff, 0, "sc1") if track else raw(buf_load("buffer_load_dword", vT1, addr, srd, soff, 0, "sc1").txt)),
                raw("s_waitcnt vmcnt(0)", "wait_vm0" if track else "wait"),
                salu("s_sub_u32", sSPIN, sSPIN, 1), valu(cmp, VCC, val, vT1), raw(f"s_cbranch_scc1 {name}_x", "branch"), raw(f"s_cbranch_vccnz {name}", "branch", rd=VCC.regs()), label(name + "_x")]
    def poll1w(self, name, addr, val):
        if not self.P.get("p1w", 1): return self.poll(name, sWS, addr, sKVo, val, "v_cmp_gt_u32")
        return [salu("s_cmp_eq_u32", None, sW, self.P.get("pw", 3)), raw(f"s_cbranch_scc0 {name}_x", "branch")] + self.poll(name, sWS, addr, sKVo, val, "v_cmp_gt_u32", track=False) + [barrier()]
    def chunk_dma(self, c):
        pol = self.P["qpol"]; base = STG[c % 3]; tag = ("c", c); g = []
        pre = [salu("s_lshl_b32", sWQo, sROT, 19), salu("s_add_u32", M0, sW4K, base), salu("s_add_u32", sWQo, sWQo, sWQw)]
        imm = [0, 1024, 2048, 3072]
        for j in range(4):
            g.append((pre if j == 0 else []) + [buf_dma(vWD[j], sWQ, sWQo, imm[j], pol, tag)])
        for j in range(5):
            pre = []
            if j == 0: pre = [salu("s_add_u32", M0, sM0x, base + 16384), salu("s_lshl_b32", sXo, sROT, 7)]
            if j == 4: pre = [salu("s_add_u32", M0, sM0x, base + 16384 + 4096), salu("s_add_u32", sROT, sROT, 1), salu("s_cmp_eq_u32", None, sROT, 10), salu("s_cselect_b32", sROT, 0, sROT)]
            g.append(pre + [buf_dma(vXD[j], sX, sXo, 1024 * j if j < 4 else 0, pol, tag)])
        return g
    def kv_req(self, name, cap=None):
        kv, n = name[0], int(name[1:]); pol = self.P.get(kv.lower() + "pol", self.P["kvpol"]); g = []
        srd = sK if kv == "K" else sV; slot = (KS if kv == "K" else VS)[n & 3]
        for j in range(4):
            voff = vKD[j] if kv == "K" else vVD[j & 1]
            pre = [salu("s_add_u32", M0, sW4K, slot), salu("s_add_u32", sKVo, sW4K, n * 16384)] if j == 0 else []
            if cap: pre = pre + [wait_vm(cap - 1)]
            if name in self.P.get("reg", {}): g.append(pre[1:] + [buf_load("buffer_load_dwordx4", aSTG[name].sub(4 * j, 4), voff, srd, sKVo, 1024 * j, pol, name)])
            else: g.append(pre + [buf_dma(voff, srd, sKVo, 1024 * j, pol, name)])
        return g
    def kv_write(self, name):
        kv, n = name[0], int(name[1:]); slot = (KS if kv == "K" else VS)[n & 3]; ad = vTMP[18 + (kv == "V" and n > 0)]
        g = []
        for j in range(4):
            pre = [valu("v_add_u32", ad, sW4K, vL16), valu("v_add_u32", ad, slot, ad)] if j == 0 else []
            g.append(pre + [ds_write("ds_write_b128", ad, aSTG[name].sub(4 * j, 4), 1024 * j)])
        return g

    def q_reads(self, c, s):
        if "R" in self.P["x"] and (c, s) > (0, 1): return []
        st = STG[c % 3]; se = 1 if st == STG[0] else 0; rel = st - (STG[0] if se else STG[1]); p = s & 1
        if self.P.get("q32", 1):
            rA = lambda a, t: ds_read("ds_read_b64_tr_b16", aFA32(p, a).sub(2 * t, 2), vQA[se][a], rel + (16 * s + 4 * t) * 256)
            rB = lambda u: ds_read("ds_read_b128", aFB32(p, u), vQB32[se][u == 2][s], rel + (4096 if u == 1 else 0))
            return [rB(0), rA(0, 0), rA(0, 1), rB(2), rB(1), rA(1, 0), rA(1, 1)]
        rA = lambda a, t: ds_read("ds_read_b64_tr_b16", aFA(p, a).sub(2 * t, 2), vQA[se][a], rel + (32 * s + 4 * t) * 256)
        rB = lambda qb: ds_read("ds_read_b128", aFB(p, qb), vQB[se][s], rel + qb * 2048)
        return [rB(0), rA(0, 0), rA(0, 1), rB(1), rB(2), rB(3), rB(4), rA(1, 0), rA(1, 1), rA(2, 0), rA(2, 1), rA(3, 0), rA(3, 1)]
    def qproj(self):
        A, P = self.A, self.P; plan = self.plan; q32 = P.get("q32", 1)
        NS, NM = (4, 5) if q32 else (2, 20)
        A(flat([flat(self.kv_req(n)) for n in plan if plan[n] == "pro"]))
        if P.get("pst"): A(self.stamp())
        A(wait_vm_tag(("c", 0)), barrier(), self.stamp(), self.q_reads(0, 0))
        slots = [(c, s, i) for c in range(10) for s in range(NS) for i in range(NM)]
        gaps = {sl: [] for sl in slots}; idx = {sl: k for k, sl in enumerate(slots)}
        nxt = [0]
        def place(groups, start, step):
            k = max(start, nxt[0])
            for grp in groups:
                gaps[slots[min(int(k), len(slots) - 1)]] += grp; k += step
            nxt[0] = k
        BG = 2 if q32 else 5
        for c in range(10):
            for s_ in range(NS - 1):
                rd = self.q_reads(c, s_ + 1)
                for k, r_ in enumerate(rd): gaps[(c, s_, (k * NM) // max(len(rd), 1))].append(r_)
            if c < 9:
                rd = self.q_reads(c + 1, 0)
                gaps[(c, NS - 1, BG)] += [wait_lgkm(0), wait_vm_tag(("c", c + 1)), barrier()] + (self.stamp() if P.get("qst") else [])
                for k, r_ in enumerate(rd): gaps[(c, NS - 1, BG + (k * (NM - BG)) // len(rd))].append(r_)
        u = 1 if q32 else 2
        place(self.chunk_dma(2), 1, u)
        for c in range(10):
            for n in plan:
                if plan[n] == c: place(self.kv_req(n), idx[(c, 0, 0)], u)
            for n, when in P.get("reg", {}).items():
                if when == c: assert c >= 8 and n in ("V0", "K3"); place(self.kv_write(n), idx[(c, 0, 0)], u)
            if c + 3 < 10 and "Q" not in P["x"]: place(self.chunk_dma(c + 3), idx[(c, NS - 1, BG + 1)], P.get("qsp", 1.5) * u)
            for n in plan:
                if plan[n] == c + 0.5: place(self.kv_req(n), idx[(c, 0, 0)], u)
        if P.get("qov", 1) and not q32:
            pre_, cv = self.q_conv()
            for k, i_ in enumerate(pre_): gaps[(9, 0, k)].append(i_)
            self.qleft = []
            for k, grp in enumerate(cv):
                if k + 5 < 20: gaps[(9, 1, k + 5)] += grp
                else: self.qleft += grp
        for (c, s_, i) in slots:
            p = s_ & 1; z = (c == 0 and s_ == 0)
            if q32:
                a, u_ = [(0, 0), (0, 2), (0, 1), (1, 0), (1, 1)][i]; d = vACC32(i)
                m = mfma32(d, aFA32(p, a), aFB32(p, u_), 0 if z else d)
            else:
                a, qb = divmod(i, 5)
                m = mfma16(vACC(a, qb), aFA(p, a), aFB(p, qb), 0 if z else vACC(a, qb))
            A(m, gaps[(c, s_, i)])
    def q_conv(self):
        P = self.P; L = []; A = lambda *x: L.extend(x); cv = []
        g, q, t, hh, wa, ra, wb, wc = vTMP[0], vTMP[3], vTMP[4], vTMP[7], vTMP[8], vTMP[9], vTMP[10], vTMP[11]
        A(salu("s_mul_i32", sT, sRG, 20480), salu("s_add_u32", sT, sT, QX))
        A(salu("s_lshl_b32", sT2, sKG, 14), salu("s_add_u32", sT2, sT2, sT), valu("v_add_u32", vE[0], sT2, vL16), salu("s_mul_i32", sT2, sKG, -8192), salu("s_add_u32", sT2, sT2, 4096))
        qra = vE + [ra]; self.qra = qra
        for qb in range(1, 5): A(valu("v_add_u32", qra[qb], sT2, qra[qb - 1]))
        def conv(acc, ad, off):
            d = vTMP.sub(12 + 2 * (conv.k % 3), 2); conv.k += 1
            return [valu("v_pk_mul_f32", acc.sub(0, 2), acc.sub(0, 2), sC2), valu("v_pk_mul_f32", acc.sub(2, 2), acc.sub(2, 2), sC2),
                    valu("v_cvt_pk_bf16_f32", d[0], acc[0], acc[1]), valu("v_cvt_pk_bf16_f32", d[1], acc[2], acc[3]), ds_write("ds_write_b64", ad, d, off)]
        conv.k = 0
        if P.get("q32", 1):
            A(valu("v_and_b32", t, 1, g), valu("v_lshlrev_b32", t, 12, t), valu("v_lshl_add_u32", t, q, 4, t), valu("v_lshl_add_u32", t, hh, 3, t))
            A(salu("s_lshl_b32", sT, sW, 10), salu("s_add_u32", sT2, sT, QX + 32768), valu("v_add_u32", wc, sT2, t), salu("s_lshl_b32", sT3, sRG, 14), salu("s_add_u32", sT3, sT3, QX))
            A(salu("s_add_u32", sT2, sT, sT3), valu("v_add_u32", wa, sT2, t), salu("s_xor_b32", sT, sT, 1024), salu("s_add_u32", sT2, sT, sT3), valu("v_add_u32", wb, sT2, t))
            for i, (ad, off) in enumerate([(wa, 0), (wc, 0), (wa, 8192), (wb, 0), (wb, 8192)]):
                for i4 in range(4): cv.append(conv(vACC32(i).sub(4 * i4, 4), ad, off + 256 * i4))
        else:
            A(salu("s_lshl_b32", sT2, sKG, 11), salu("s_add_u32", sT, sT, sT2))
            A(valu("v_lshrrev_b32", t, 1, g), valu("v_lshlrev_b32", wa, 8, t), valu("v_lshl_add_u32", wa, q, 4, wa), valu("v_and_b32", t, 1, g), valu("v_lshl_add_u32", wa, t, 3, wa), valu("v_add_u32", wa, sT, wa))
            for a in range(4):
                for qb in range(5): cv.append(conv(vACC(a, qb), wa, qb * 4096 + (a >> 1) * 1024 + (a & 1) * 512))
        return L, cv
    def q_finish(self):
        A, P = self.A, self.P
        if P.get("qov", 1) and not P.get("q32", 1): A(self.qleft)
        else:
            pre_, cv = self.q_conv(); A(pre_, flat(cv))
        qra = self.qra
        for n in self.plan:
            if self.plan[n] == 10: A(flat(self.kv_req(n)))
        A(wait_lgkm(0), wait_vm_tag("K0"), barrier(), self.stamp())
        self.qrd = [ds_read("ds_read_b128", aQ(qb, ks), qra[qb], ks * 1024) for ks in range(4) for qb in range(5)]

    def colmax(self, dst, src8, tmp):
        o = [valu("v_max3_f32", dst, src8[0], src8[1], src8[2]), valu("v_max3_f32", dst, dst, src8[3], src8[4]), valu("v_max3_f32", dst, dst, src8[5], src8[6]), valu("v_max_f32", dst, dst, src8[7])]
        return o
    def xlane(self, op, regs, tmps):
        o = []
        for sw in ("v_permlane32_swap_b32", "v_permlane16_swap_b32"):
            o += [valu("v_mov_b32", t, r) for r, t in zip(regs, tmps)]
            o += [valu(sw, r, t) for r, t in zip(regs, tmps)]
            o += [valu(op, r, r, t) for r, t in zip(regs, tmps)]
        return o
    def softmax_list(self, a):
        Sx, Px = vS[a], vP[a]; o = []
        for e in range(41):
            if e < 40: o.append(valu("v_exp_f32", vE[e & 3], Sx[e]))
            p = e - 1
            if p >= 0:
                qb, j = divmod(p, 8)
                if j == 1: o.append(valu("v_add_f32", vBS[qb], vE[(p - 1) & 3], vE[p & 3]))
                elif j > 1: o.append(valu("v_add_f32", vBS[qb], vBS[qb], vE[p & 3]))
                if j & 1: o.append(valu("v_cvt_pk_bf16_f32", Px[4 * qb + (j >> 1)], vE[(p - 1) & 3], vE[p & 3]))
        x = self.P["x"]
        if "e" in x: o = [i for i in o if not i.txt.startswith("v_exp")]
        if "a" in x: o = [i for i in o if not i.txt.startswith("v_add")]
        if "c" in x: o = [i for i in o if not i.txt.startswith("v_cvt")]
        return o
    def slow_path(self, a):
        dl = [vTMP[i] for i in range(5)]; tm = [vTMP[5 + i] for i in range(5)]; ff = [vTMP[10 + i] for i in range(5)]
        o = [label(f"Lslow{a}"), nop(15)]
        for qb in range(5): o += self.colmax(dl[qb], vS[a].sub(8 * qb, 8), None)
        o += self.xlane("v_max_f32", dl, tm)
        for qb in range(5): o += [valu("v_max_f32", dl[qb], 0, dl[qb]), valu("v_exp_f32", ff[qb], Neg(dl[qb]))]
        for qb in range(5):
            for e in range(4): o.append(valu("v_sub_f32", vNM[4 * qb + e], vNM[4 * qb + e], dl[qb]))
            for e in range(8): o += [valu("v_sub_f32", vS[a][8 * qb + e], vS[a][8 * qb + e], dl[qb]), valu("v_sub_f32", vS[a ^ 1][8 * qb + e], vS[a ^ 1][8 * qb + e], dl[qb])]
            o.append(valu("v_mul_f32", vLs[qb], vLs[qb], ff[qb]))
        for j in range(8):
            for qb in range(5):
                for k in range(4): o.append(valu("v_accvgpr_read_b32", vE[k], aO(j, qb)[k]))
                for k in range(4): o.append(valu("v_mul_f32", vE[k], vE[k], ff[qb]))
                for k in range(4): o.append(valu("v_accvgpr_write_b32", aO(j, qb)[k], vE[k]))
        o += self.softmax_list(a)
        o += [nop(4), raw(f"s_setpc_b64 {sRET}", "branch")]
        return o

    def attention(self):
        A, P = self.A, self.P; x = P["x"]; plan = P["plan"]
        JORD = [4, 5, 6, 7, 0, 1, 2, 3]
        frags = []
        for n in range(-1, 17):
            if n + 1 <= 15: frags += [(n, f) for f in range(8)]
            if n - 1 >= 0: frags += [(n, f) for f in range(8, 16)]
        ring = {fr: aRING[i % 4] for i, fr in enumerate(frags)}
        for f in range(10, 16): ring[(16, f)] = Ac(176 + 4 * (f - 10), 4)
        slots = [(n, f, qb) for (n, f) in frags for qb in range(5)]
        gaps = {sl: [] for sl in slots}; pre = {sl: [] for sl in slots}; idx = {sl: k for k, sl in enumerate(slots)}
        def reads(fr):
            n, f = fr
            if f < 8:
                kb, ks = f >> 2, f & 3
                return [] if "k" in x else [ds_read("ds_read_b128", ring[fr], vKR[ks], KS[(n + 1) & 3] + kb * 4096)]
            j = JORD[f - 8]
            return [] if "v" in x else [ds_read("ds_read_b64_tr_b16", ring[fr].sub(2 * t, 2), vVR[j], VS[(n - 1) & 3] - VS[0] + t * 4096) for t in range(2)]
        def mf(sl):
            n, f, qb = sl
            if f < 8:
                b = n + 1; kb, ks = f >> 2, f & 3; d = vS[b & 1].sub(8 * qb + 4 * kb, 4)
                return mfma16(d, ring[(n, f)], aQ(qb, ks), d if ks else (0 if b == 0 else vNM.sub(4 * qb, 4)))
            b = n - 1; j = JORD[f - 8]; d = aO(j, qb)
            return mfma16(d, ring[(n, f)], vP[b & 1].sub(4 * qb, 4), 0 if b == 0 else d)
        head = []
        LA = 2
        done = set(plan)
        for i, fr in enumerate(frags):
            n, f = fr
            first = (i == [k for k, z in enumerate(frags) if z[0] == n][0])
            if i < LA: tgt = [head, head]
            else:
                base = idx[frags[i - LA] + (0,)]
                tgt = [gaps[slots[base + 1]], gaps[slots[base + 3]]]
            if first and n >= 0:
                sy = [wait_lgkm(0)]
                if n + 1 <= 15: sy.append(wait_vm_tag(f"K{n+1}"))
                if n - 1 >= 0: sy.append(wait_vm_tag(f"V{n-1}"))
                sy += [barrier()] + (self.stamp() if n % (8 if P.get("qst") else 2) == 0 else [])
                tgt[0] += sy
                req = []
                ld = P.get("lead", 3)
                for m in range(0, n + ld + 1):
                    for nm in ([f"K{m+1}"] if m + 1 <= 15 else []) + ([f"V{m-1}"] if 0 <= m - 1 <= 15 else []):
                        if nm not in done: done.add(nm); req += self.kv_req(nm, P.get("cap") if n >= P.get("capfrom", 1) else None)
                if n == 0:
                    wr_ = []
                    for nm, when in P.get("reg", {}).items():
                        if when >= 10: wr_ += self.kv_write(nm)
                    req = req[:4] + wr_ + req[4:]
                if "d" in x and n >= 1: req = []
                if P["tail"]:
                    if n == 1:
                        req += [[salu("s_min_u32", sT, sH, 1), salu("s_lshl_b32", sT, sT, 30), valu("v_lshrrev_b32", vZ, 5, vTID), valu("v_min_u32", vZ, 1, vZ), valu("v_lshlrev_b32", vZ, 30, vZ),
                                 valu("v_lshl_add_u32", vZ, vL, 7, vZ), valu("v_add_u32", vZ, sT, vZ), valu("v_mov_b32", vT, 0), salu("s_lshl_b32", sT, sB, 12), salu("s_add_u32", sT, sT, FL),
                                 buf_store("buffer_store_dword", vT, vZ, sWS, sT, 0, "sc1", "flag")]]
                    if n == 5:
                        req += [[wait_vm_tag("flag"), salu("s_min_u32", sT, sH, 1), salu("s_lshl_b32", sT, sT, 30), valu("v_mov_b32", vT, 1)] + self.one_lane(vZ) +
                                [valu("v_add_u32", vZ, sT, vZ), salu("s_lshl_b32", sT, sB, 2), buf_store("buffer_store_dword", vT, vZ, sDBG, sT, 0, "sc1")]]
                    if n == P.get("wtouch", -1): req += self.wo_touch()
                    if n == 12: req += [[valu("v_mov_b32", vZ, 0), salu("s_lshl_b32", sT, sB, 2), buf_load("buffer_load_dword", vCNT, vZ, sDBG, sT, 0, "sc1")]]
                    for i_, n_ in enumerate(P.get("wo1", [13, 14, 14])):
                        if n == n_: req += self.wo_unit(i_)
                sp = P.get("sp", 8) if 0 < n < 13 else (2 if n in (0, 15, 16) else 4)
                for q_, grp in enumerate(req): gaps[slots[base + 4 + sp * q_]] += grp
            rd = reads(fr)
            if n == 16 and f >= 10: tgt = [gaps[slots[idx[(16, 8, 0)] + f - 10]]] * 2
            for k, r_ in enumerate(rd): tgt[k].append(r_)
        for n in range(0, 16):
            have = [sl for sl in slots if sl[0] == n]
            if n == 0:
                dl = [vTMP[i] for i in range(5)]; tm = [vTMP[5 + i] for i in range(5)]; o = []
                for qb in range(5): o += self.colmax(dl[qb], vS[0].sub(8 * qb, 8), None)
                o += self.xlane("v_max_f32", dl, tm)
                for qb in range(5):
                    for e in range(4): o.append(valu("v_sub_f32", vNM[4 * qb + e], 0, dl[qb]))
                for qb in range(5):
                    for e in range(8): o.append(valu("v_sub_f32", vS[0][8 * qb + e], vS[0][8 * qb + e], dl[qb]))
                pre[have[0]] += o
            sm = self.softmax_list(n & 1)
            ng = len(have) - 4
            cost = [2 if i.trans else 1 for i in sm]; tot = sum(cost); acc = 0
            for i_, c_ in zip(sm, cost):
                gaps[have[min(ng - 1, (acc * ng) // max(tot, 1))]].append(i_); acc += c_
            addl = [valu("v_add_f32", vLs[qb], vLs[qb], vBS[qb]) for qb in range(5)]
            if n > 0 and "b" not in x:
                gaps[have[-4]].append(valu("v_max3_f32", vT1, vBS[0], vBS[1], vBS[2]))
                gaps[have[-3]].append(valu("v_max3_f32", vT1, vT1, vBS[3], vBS[4]))
                gaps[have[-2]].append(valu("v_cmp_nge_f32", VCC, sTHR, vT1))
                gaps[have[-1]] += [raw(f"s_cbranch_vccnz Lstub{n}", "branch", rd=VCC.regs()), label(f"Lret{n}")]
                self.stubs += [label(f"Lstub{n}"), raw(f"s_call_b64 {sRET}, Lslow{n & 1}", "branch"), raw(f"s_branch Lret{n}", "branch")]
            gaps[have[-1]] += addl
        last = [sl for sl in slots if sl[0] == 16]
        wr, mlw, mlw2, mlr, mlr2 = vTMP[15], vTMP[16], vTMP[17], vTMP[18], vTMP[19]
        nm = [vTMP[i] for i in range(5)]; ll = [vTMP[5 + i] for i in range(5)]
        so, sp = self.so, self.sp
        ex = self.xlane("v_add_f32", vLs, [vTMP[5 + i] for i in range(5)])
        ad = [salu("s_mul_i32", sT, sW, 20480), valu("v_add_u32", wr, sT, vL16), salu("s_mul_i32", sT, sW, 320), salu("s_add_u32", sT, sT, MLN), valu("v_and_b32", mlr, 15, vL), valu("v_lshl_add_u32", mlw, mlr, 2, sT),
              valu("v_add_u32", mlw2, MLL - MLN, mlw), salu("s_xor_b32", sT2, sW, 2), salu("s_mul_i32", sT, sT2, 320), salu("s_add_u32", sT, sT, MLN), valu("v_lshl_add_u32", mlr, mlr, 2, sT), valu("v_add_u32", mlr2, MLL - MLN, mlr),
              salu("s_mul_i32", sT, sT2, 20480), valu("v_add_u32", vT4, sT, vL16)]
        h15 = [sl for sl in slots if sl[0] == 15]
        for k, i_ in enumerate(ad): gaps[h15[2 * k]].append(i_)
        ex += [ds_write("ds_write_b32", mlw, vNM[4 * qb], 64 * qb) for qb in range(5)] + [ds_write("ds_write_b32", mlw2, vLs[qb], 64 * qb) for qb in range(5)]
        for k, i_ in enumerate(ex): gaps[last[(k * 10) // len(ex)]].append(i_)
        gaps[last[11]] += [wait_lgkm(0), barrier()]
        gaps[last[11]] += [ds_read("ds_read_b32", nm[qb], mlr, 64 * (4 - qb)) for qb in range(5)] + [ds_read("ds_read_b32", ll[qb], mlr2, 64 * (4 - qb)) for qb in range(5)]
        for k in range(20):
            j, qb = 4 + k // 5, k % 5
            gaps[last[min(39, max(12 + k, k + 4))]].append(ds_write("ds_write_b128", wr, aO(j, qb), MX + k * 1024))
        fa = []
        for qb in range(5):
            fa += [valu("v_min_f32", vE[qb & 3], nm[qb], vNM[4 * qb]), valu("v_sub_f32", so[qb][0], vE[qb & 3], vNM[4 * qb]), valu("v_sub_f32", sp[qb][0], vE[qb & 3], nm[qb])]
        for qb in range(5): fa += [valu("v_exp_f32", so[qb][0], so[qb][0]), valu("v_exp_f32", sp[qb][0], sp[qb][0])]
        for qb in range(5): fa += [valu("v_mul_f32", ll[qb], ll[qb], sp[qb][0])]
        for qb in range(5): fa += [valu("v_fmac_f32", ll[qb], vLs[qb], so[qb][0])]
        for qb in range(5): fa += [valu("v_rcp_f32", ll[qb], ll[qb])]
        for qb in range(5): fa += [valu("v_mul_f32", so[qb][0], so[qb][0], ll[qb]), valu("v_mul_f32", sp[qb][0], sp[qb][0], ll[qb])]
        for qb in range(5): fa += [valu("v_mov_b32", so[qb][1], so[qb][0]), valu("v_mov_b32", sp[qb][1], sp[qb][0])]
        for k, i_ in enumerate(fa): gaps[last[16 + (k * 24) // len(fa)]].append(i_)
        A(head[:0], self.qrd[:5], head, self.qrd[5:])
        for sl in slots:
            A(pre[sl], mf(sl) if "m" not in x else nop(2), gaps[sl])

    def epilogue(self):
        A, P = self.A, self.P
        rd = vT4; so, sp = self.so, self.sp
        T = lambda j, qb: V(40 + 4 * (5 * j + qb), 4)
        order = [(ks, qb, u) for ks in range(2) for qb in range(5) for u in range(2)]
        prep = lambda j, qb: [valu("v_accvgpr_read_b32", T(j, qb)[e], aO(j, qb)[e]) for e in range(4)] + [valu("v_pk_mul_f32", T(j, qb).sub(2 * e, 2), T(j, qb).sub(2 * e, 2), so[qb]) for e in range(2)]
        NP = P.get("npre", 20)
        for k, (ks, qb, u) in enumerate(order[:NP]): A(prep(2 * ks + u, qb))
        A(salu("s_lshl_b32", sT, sB, 5), salu("s_add_u32", sT, sT, sH), salu("s_lshl_b32", sT, sT, 1), salu("s_add_u32", sT, sT, sKG), salu("s_mul_i32", sT, sT, 20480))
        A(salu("s_mul_i32", sT2, sRG, 5120), salu("s_add_u32", sWQo, sT, sT2), salu("s_add_u32", sXo, sWQo, 10240))
        A(salu("s_lshl_b32", sT, sKG, 12), salu("s_mul_i32", sT3, sKG, -2048), salu("s_add_u32", sT3, sT3, 1024), valu("v_add_u32", vBO[0], sT, vL16))
        for ii in range(1, 5): A(valu("v_add_u32", vBO[ii], sT3, vBO[ii - 1]))
        A(wait_lgkm(0), barrier(), self.stamp())
        RQ = [V(160 + 4 * i, 4) for i in range(5)] + [V(4 + 4 * i, 4) for i in range(4)] + [V(200, 4)]
        rdl = [ds_read("ds_read_b128", RQ[k % 10], rd, MX + ((2 * ks + u) * 5 + 4 - qb) * 1024) for k, (ks, qb, u) in enumerate(order)]
        A(rdl[:10])
        for k, (ks, qb, u) in enumerate(order):
            pk = vP[ks].sub(4 * qb, 4); t = T(2 * ks + u, qb)
            if k >= NP: A(prep(2 * ks + u, qb))
            A([valu("v_pk_fma_f32", t.sub(2 * e, 2), RQ[k % 10].sub(2 * e, 2), sp[qb], t.sub(2 * e, 2)) for e in range(2)])
            if k + 10 < 20: A(rdl[k + 10])
            A([valu("v_cvt_pk_bf16_f32", pk[2 * u + e], t[2 * e], t[2 * e + 1]) for e in range(2)])
            if u: A(buf_store("buffer_store_dwordx4", pk, vBO[qb], sWS, sXo if ks else sWQo, 0, P["opol"]))
        if P["tail"]: self.tail()
        if P["stamps"]:
            A(wait_vm(0), self.stamp(), raw("s_memtime s[96:97]"), raw("s_waitcnt lgkmcnt(0)", "wait"), salu("s_sub_u32", S(96), S(96), S(98)))
            A(salu("s_lshl_b32", sT, S(2), 2), salu("s_add_u32", sT, sT, sW), salu("s_lshl_b32", sT, sT, 7), salu("s_add_u32", sT, sT, STAMP_OFF), valu("v_mov_b32", vT, 0))
            for i in range(self.nst):
                A(valu("v_mov_b32", vT2, sST(i)), buf_store("buffer_store_dword", vT2, vT, sWS, sT, 4 * i))
            A(valu("v_mov_b32", vT2, S(96)), buf_store("buffer_store_dword", vT2, vT, sWS, sT, 4 * 31))
            if P.get("probe") is not None:
                A(salu("s_cmp_eq_u32", None, S(2), P.get("pwg", 101)), raw("s_cbranch_scc0 L1_done", "branch"), salu("s_cmp_eq_u32", None, sW, 0), raw("s_cbranch_scc0 L1_done", "branch"))
                A(salu("s_sub_u32", sT, sST(P["probe"]), sST(0)), salu("s_min_u32", sT, sT, 20000), salu("s_mul_i32", sT, sT, 4), salu("s_add_u32", sT, sT, sST(self.nst - 1)))
                A(label("Lspin"), raw("s_memrealtime s[96:97]"), raw("s_waitcnt lgkmcnt(0)"), salu("s_sub_u32", sT2, S(96), sT), salu("s_cmp_lt_i32", None, sT2, 0), raw("s_cbranch_scc1 Lspin", "branch"))
        A(label("L1_done"), raw("s_endpgm"))

    def tail(self):
        A, P = self.A, self.P
        g, r, cc, q, t, b0 = (vTMP[i] for i in range(6))
        A(valu("v_lshrrev_b32", g, 4, vL), valu("v_bfe_u32", r, vL, 2, 2), valu("v_and_b32", cc, 3, vL), valu("v_and_b32", q, 15, vL))
        A(valu("v_lshl_add_u32", b0, g, 2, r), valu("v_mul_u32_u24", b0, 160, b0), valu("v_lshl_add_u32", b0, cc, 3, b0))
        A(salu("s_mul_i32", sT, sKG, 26 * UNIT + 128), salu("s_mul_i32", sT2, sKG, 10 * UNIT + 128), salu("s_add_u32", sT2, sT2, 6 * UNIT))
        A(salu("s_mul_i32", sT3, sKG, -64), salu("s_add_u32", sT3, sT3, 32))
        A(valu("v_add_u32", vAR[0][0], sT, b0), valu("v_add_u32", vAR[1][0], sT2, b0))
        for aa in range(1, 5): A(valu("v_add_u32", vAR[0][aa], sT3, vAR[0][aa - 1]), valu("v_add_u32", vAR[1][aa], sT3, vAR[1][aa - 1]))
        A(salu("s_lshl_b32", sT, sB, 5), salu("s_lshl_b32", sT2, sHG, 3), salu("s_add_u32", sT, sT, sT2))
        A(salu("s_lshl_b32", sT, sT, 7), salu("s_add_u32", sKVo, sT, FL), valu("v_and_b32", t, 7, vL), valu("v_max_u32", t, 1, t), valu("v_xor_b32", t, sJ, t), valu("v_lshlrev_b32", t, 7, t))
        A(valu("v_cmp_gt_u32", VCC, 1, vCNT), raw("s_cbranch_vccz Lcnt_ok", "branch", rd=VCC.regs()))
        A(valu("v_mov_b32", vZ, 0), salu("s_lshl_b32", sT, sB, 2), self.poll("Lpoll0", sDBG, vZ, sT, 1, "v_cmp_gt_u32", track=False), label("Lcnt_ok"))
        A(wait_vm(0), barrier(), self.stamp(), self.flag_store(1))
        W2 = P.get("w2", 0)
        for i in range(3, 3 + W2): A(flat(self.wo_unit(i)))
        A(self.poll1w("Lpoll1", t, 1), self.stamp())
        def breq(u):
            pre = [salu("s_add_u32", sT, sU0, u), salu("s_and_b32", sT, sT, 31), salu("s_mul_i32", sT, sT, 10240), salu("s_add_u32", sBo, sOB, sT)]
            g_ = []
            for ii in range(5):
                g_.append(pre + [buf_load("buffer_load_dwordx4", gB(u, ii), vBO[ii], sWS, sBo, 0, P.get("bpol", "sc1"))]); pre = []
            return g_
        frags = [(u, aa) for u in range(16) for aa in range(5)]
        ring = {fr: aRING[i % 4] for i, fr in enumerate(frags)}
        slots = [(u, aa, ii) for (u, aa) in frags for ii in range(5)]
        gaps = {sl: [] for sl in slots}; idx = {sl: k for k, sl in enumerate(slots)}
        head = []
        for i, (u, aa) in enumerate(frags):
            se = 0 if u < 6 else 1; off = (u if u < 6 else u - 6) * UNIT
            rd = [ds_read("ds_read_b64_tr_b16", ring[(u, aa)].sub(2 * tt, 2), vAR[se][aa], off + tt * 2560) for tt in range(2)]
            if i < 2: head += rd
            else:
                base = idx[frags[i - 2] + (0,)]
                if aa == 0 and u >= 6 and u % 2 == 0 and (u == 6 or u // 2 >= 3 + W2):
                    gaps[slots[base + 1]] += ([wait_lgkm(0)] if u == 6 else []) + [wait_vm_tag(("wo", u // 2)), barrier()]
                gaps[slots[base + 1]].append(rd[0]); gaps[slots[base + 3]].append(rd[1])
        BD = P.get("bd", 3)
        A(head, flat(breq(2)), flat(breq(3)))
        seq = {}
        for u in range(4, 16): seq.setdefault(max(u - BD, 0) if u - BD >= 1 else 0, []).extend(breq(u))
        WS = P.get("w2at", [0, 2, 4, 6, 8])
        for i in range(3 + W2, 8): seq.setdefault(WS[i - 3], []).extend(self.wo_unit(i))
        for u, gl in seq.items():
            for k, grp in enumerate(gl): gaps[slots[idx[(u, 0, 0)] + (k * 25) // len(gl)]] += grp
        wa, ra = vTMP[6], vTMP[7]
        def exc(dst, w_): return [salu("s_and_b32", sT, w_, 1), salu("s_mul_i32", sT, sT, 13312), salu("s_lshr_b32", sT2, w_, 1), salu("s_mul_i32", sT2, sT2, 26 * UNIT), salu("s_add_u32", sT, sT, sT2), valu("v_add_u32", dst, sT, vL16)]
        for k, i_ in enumerate(exc(wa, sW) + [salu("s_xor_b32", sT3, sW, 2)] + exc(ra, sT3)): gaps[slots[idx[(14, 0, 0)] + k]].append(i_)
        late = []
        for s_ in (15, 20, 16, 21, 12, 17, 22, 13, 18, 23, 14, 19, 24):
            w_ = ds_write("ds_write_b128", wa, gACC(s_), (s_ - 12) * 1024)
            k = idx[(15, s_ % 5, s_ // 5)] + 8
            if k < len(slots): gaps[slots[k]].append(w_)
            else: late.append(w_)
        for (u, aa, ii) in slots:
            d = gACC(5 * ii + aa)
            if P.get("gw", 1) and u >= 2 and aa == 0 and ii == 0: A(wait_lgkm_for(gB(u, 4)))
            A(mfma16(d, ring[(u, aa)], gB(u, ii) if u >= 2 else vP[u].sub(4 * ii, 4), 0 if u == 0 else d), gaps[(u, aa, ii)])
        A(self.stamp(), late)
        A(salu("s_lshl_b32", sT, sB, 3), salu("s_add_u32", sT, sT, sJ), salu("s_mul_i32", sWQo, sT, 4 * 26624), salu("s_add_u32", sWQo, sWQo, PB))
        A(salu("s_mul_i32", sT, sHG, 26624), salu("s_add_u32", sXo, sWQo, sT), salu("s_lshl_b32", sT, sRG, 10), salu("s_add_u32", sT3, sXo, sT), salu("s_add_u32", sT3, sT3, 24576))
        A(salu("s_lshl_b32", sT, sKG, 30), valu("v_add_u32", vT3, sT, vL16))
        A(salu("s_mul_i32", sT, sRG, 12288), salu("s_mul_i32", sT2, sKG, 6144), salu("s_add_u32", sT, sT, sT2), salu("s_add_u32", sXo, sXo, sT), valu("v_add_u32", vT2, 4096, vL16))
        A(wait_lgkm(0), barrier())
        RR = lambda s_: V(120 + 4 * s_, 4) if s_ < 10 else V(180 + 4 * (s_ - 10), 4)
        for s_ in range(13): A(ds_read("ds_read_b128", RR(s_), ra, (12 - s_) * 1024))
        for p in range(7):
            pk = V(192 + 4 * (p & 1), 4)
            for z in range(2 if p < 6 else 1):
                s_ = 2 * p + z
                A([valu("v_pk_add_f32", gACC(s_).sub(2 * e, 2), gACC(s_).sub(2 * e, 2), RR(s_).sub(2 * e, 2)) for e in range(2)])
                A([valu("v_cvt_pk_bf16_f32", pk[2 * z + e], gACC(s_)[2 * e], gACC(s_)[2 * e + 1]) for e in range(2)])
            if p < 6: A(buf_store("buffer_store_dwordx4", pk, vL16 if p < 4 else vT2, sWS, sXo, 1024 * (p & 3), "sc1"))
            else: A(buf_store("buffer_store_dwordx4", pk, vT3, sWS, sT3, 0, "sc1"))
        oa = [vTMP[8], vTMP[9]]; it, m_, i_ = vTMP[10], vTMP[11], vTMP[12]
        sIT = [sWQw, sM0x]
        for k in range(2):
            A(salu("s_lshl_b32", sT, sHG, 2), salu("s_add_u32", sT, sT, sW), salu("s_add_u32", sT, sT, 16 * k))
            A(salu("s_lshl_b32", sIT[k], sT, 10), salu("s_add_u32", sIT[k], sIT[k], sWQo))
            A(salu("s_mul_i32", sT3, sT, 43), salu("s_lshr_b32", sT3, sT3, 8), salu("s_mul_i32", sBo, sT3, 6), salu("s_sub_u32", sBo, sT, sBo), salu("s_lshr_b32", sT2, sT3, 1), salu("s_and_b32", sT3, sT3, 1))
            if k == 1:
                A(salu("s_cmp_ge_u32", None, sT, 24), salu("s_cselect_b32", sT2, sBo, sT2), salu("s_cselect_b32", sBo, 6, sBo))
            A(valu("v_and_b32", m_, 1, g), salu("s_lshl_b32", sBo, sBo, 1), valu("v_add_u32", m_, sBo, m_))
            if k == 1: A(valu("v_cmp_lt_u32", VCC, 12, m_))
            A(salu("s_mul_i32", sBo, sT3, 24), salu("s_mul_i32", sT3, sT3, -2), salu("s_add_u32", sT3, sT3, 1), valu("v_mul_i32_i24", m_, sT3, m_), valu("v_add_u32", m_, sBo, m_))
            A(valu("v_mul_u32_u24", i_, 52, m_), valu("v_lshrrev_b32", i_, 8, i_), valu("v_mul_u32_u24", it, 5, i_), valu("v_sub_u32", m_, m_, it))
            A(valu("v_lshl_add_u32", i_, i_, 4, q), salu("s_mul_i32", sT2, sT2, 80), salu("s_mul_i32", sBo, sB, 160), salu("s_add_u32", sT2, sT2, sBo), valu("v_add_u32", i_, sT2, i_))
            A(valu("v_mul_u32_u24", i_, 1280, i_), valu("v_lshl_add_u32", i_, m_, 5, i_), valu("v_lshrrev_b32", it, 1, g), valu("v_lshl_add_u32", i_, it, 4, i_), salu("s_mul_i32", sBo, sJ, 160), valu("v_add_u32", oa[k], sBo, i_))
            if k == 1:
                A(valu("v_mov_b32", it, 1 << 30), valu("v_cndmask_b32", oa[1], oa[1], it, VCC))
                A(salu("s_cmp_ge_u32", None, sT, 26), salu("s_cselect_b32", sT, 1 << 30, 0), valu("v_add_u32", vT4, sT, vL16), valu("v_add_u32", oa[1], sT, oa[1]))
        A(salu("s_lshl_b32", sT, sB, 5), salu("s_add_u32", sT, sT, sJ), salu("s_lshl_b32", sT, sT, 7), salu("s_add_u32", sKVo, sT, FL), valu("v_lshlrev_b32", t, 10, cc))
        A(wait_vm(0), barrier(), self.stamp(), self.flag_store(2))
        A(self.poll1w("Lpoll2", t, 2), self.stamp())
        src = lambda k, h_: V(40 + 16 * k + 4 * h_, 4)
        for k in range(2):
            for h_ in range(4):
                A(buf_load("buffer_load_dwordx4", src(k, h_), vT4 if k else vL16, sWS, sIT[k], 0, "sc1"))
                if h_ < 3: A(salu("s_add_u32", sIT[k], sIT[k], 26624))
        A(salu("s_mov_b32", sT, "0xffff0000"))
        for k in range(2):
            acc = V(80 + 24 * k, 8); tmp = V(88 + 24 * k, 8); pk = V(96 + 24 * k, 4)
            for h_ in range(4):
                d = acc if h_ == 0 else tmp
                for e in range(4): A(valu("v_lshlrev_b32", d[2 * e], 16, src(k, h_)[e]), valu("v_and_b32", d[2 * e + 1], sT, src(k, h_)[e]))
                if h_: A([valu("v_pk_add_f32", acc.sub(2 * e, 2), acc.sub(2 * e, 2), tmp.sub(2 * e, 2)) for e in range(4)])
            A([valu("v_cvt_pk_bf16_f32", pk[e], acc[2 * e], acc[2 * e + 1]) for e in range(4)])
            A(valu("v_permlane16_swap_b32", pk[0], pk[2]), valu("v_permlane16_swap_b32", pk[1], pk[3]))
            A(buf_store("buffer_store_dwordx4", pk, oa[k], sOUT, 0, 0, P["outpol"]))

    def build(self):
        P = self.P
        self.prologue(); entry = self.p; out = []
        ne = len(finish(list(entry)))
        if P.get("planA"):
            nst = self.nst
            self.p = list(entry); self.plan = P["planA"]
            self.prologue2(True); self.qproj(); self.q_finish(); self.A(raw("s_branch Ljoin", "branch"), label("LgrpB"))
            out = finish(self.p); self.nst = nst
        self.p = list(entry); self.plan = P["plan"]
        self.prologue2(); self.qproj(); self.q_finish(); self.A(label("Ljoin")); self.attention(); self.epilogue()
        rest = finish(self.p, True)
        out = out + rest[ne:] if out else rest
        out += self.stubs
        if self.stubs:
            for a in range(2): out += finish(self.slow_path(a))
        return out

def main():
    P = dict(DEF)
    if len(sys.argv) > 2: P.update(json.loads(sys.argv[2]))
    out = sys.argv[1]
    hdr = open("standalone__gqa_block_cached__near_ridge.s.ref").read().split("; Override")[0] if P.get("hdr", 1) else ""
    s = hdr
    name = "standalone__gqa_block_cached__near_ridge_kernel"
    s += f"; @launch grid=(256,1,1) block=(256,1,1) lds={LDS1}\n"
    s += '.amdgcn_target "amdgcn-amd-amdhsa--gfx950"\n'
    s += kernel_header(name) + text(K1(P).build())
    s += kernel_desc(name, 512, 256)
    open(out, "w").write(s)

if __name__ == "__main__":
    main()
```

```python
import sys, json, math, struct
from asmlib import *

def fbits(x): return "0x%08x" % struct.unpack("<I", struct.pack("<f", x))[0]
K_ = 1024
DEF = dict(cpf=16, q32=0, w2=5, npre=4, kvpol="nt", qpol="", stamps=0, rot=1, opol="sc1", wpol="", outpol="", tail=1, wtouch=13, wo1=[16, 16, 16], w2a=2, thr=65536.0, x="",
           plan={"K0": 6, "K1": 7, "K2": 8, "V0": 8, "K3": 9})

KS = [16 * K_ * i for i in range(4)]
VS = [64 * K_ + 16 * K_ * i for i in range(4)]
STG = {1: 52 * K_, 2: 88 * K_, 0: 124 * K_}
QX = 84 * K_
MX = 32 * K_
MLN = 30720
MLL = 131072
UNIT = 5120
EXC = [0, 13312, 26 * UNIT, 26 * UNIT + 13312]
PB = 20 << 20
FL = 28 << 20
LDS1 = 163840
STAMP_OFF = 16 << 20

sX, sWQ, sK, sV, sWS = S(20, 4), S(24, 4), S(28, 4), S(32, 4), S(36, 4)
sB, sH, sW, sROT = S(40), S(41), S(42), S(43)
sWQo, sXo, sKVo, sW4K, sT, sTHR, sT2, sT3 = S(44), S(45), S(46), S(47), S(48), S(49), S(50), S(51)
sRET = S(52, 2); sC2 = S(54, 2); sWQw, sM0x, sRG, sKG = S(56), S(57), S(58), S(59)
sST = lambda i: S(60 + i)
sSTT = S(96, 2)
vTID, vL, vL16, vT = V(0), V(1), V(2), V(3)
vKD = [V(4 + j) for j in range(4)]; vVD = [V(8), V(9)]
vKR = [V(10 + j) for j in range(4)]; vVR = [V(14 + j) for j in range(8)]
vLs = [V(22 + j) for j in range(5)]; vBS = [V(27 + j) for j in range(5)]
vE = [V(32 + j) for j in range(4)]; vT1, vT2, vT3, vT4 = V(36), V(37), V(38), V(39)
vS = [V(40, 40), V(80, 40)]; vP = [V(120, 20), V(140, 20)]; vNM = V(160, 20)
vACC = lambda a, qb: V(40 + 4 * (5 * a + qb), 4)
vWD = [V(180 + j) for j in range(4)]; vXD = [V(184 + j) for j in range(5)]
vQA = [[V(190 + j) for j in range(4)], [V(196 + j) for j in range(4)]]
vQB = [[V(194), V(195)], [V(200), V(201)]]
vQB32 = [[[V(120 + 8 * se + 4 * u + k) for k in range(4)] for u in range(2)] for se in range(2)]
aFA32 = lambda p, a: Ac(20 * p + 4 * a, 4)
aFB32 = lambda p, u: Ac(20 * p + 8 + 4 * u, 4)
vACC32 = lambda i: V(40 + 16 * i, 16)
aSTG = {n: Ac(72 + 16 * i, 16) for i, n in enumerate(("V0", "K3", "V1", "V2", "V3"))}
vTMP = V(204, 20)
vWO = [V(224 + j) for j in range(5)]; vCNT = V(229)
vAR = [[V(230 + j) for j in range(5)], [V(235 + j) for j in range(5)]]; vBO = [V(240 + j) for j in range(5)]
vU = [V(246, 4), V(250, 4)]; vZ = V(254)
sWO, sDBG, sOUT = S(80, 4), S(84, 4), S(88, 4)
sJ, sHG, sSPIN, sBo = S(92), S(93), S(94), S(95)
sU0, sKB, sOB = S(3), S(100), S(101)
gACC = lambda s_: V(40 + 4 * s_, 4) if s_ < 20 else V(160 + 4 * (s_ - 20), 4)
NBR = 5
gB = lambda v, ii: Ac(20 * (v % NBR) + 4 * ii, 4)
sU1 = S(4); sWOo = S(5)
aO = lambda j, qb: Ac(4 * (5 * j + qb), 4)
aRING = [Ac(160 + 4 * i, 4) for i in range(4)]
aQ = lambda qb, ks: Ac(176 + 4 * (4 * qb + ks), 4)
aFA = lambda p, a: Ac(36 * p + 4 * a, 4)
aFB = lambda p, qb: Ac(36 * p + 16 + 4 * qb, 4)
flat = lambda g: [i for x in g for i in x]

class K1:
    def __init__(self, P):
        self.P = P; self.p = []; self.nst = 0; self.stubs = []
        self.so = [V(180 + 2 * qb, 2) for qb in range(5)]; self.sp = [V(190 + 2 * qb, 2) for qb in range(5)]
    def A(self, *x):
        for i in x:
            if isinstance(i, list): self.p += i
            else: self.p.append(i)
    def stamp(self, key=False):
        if self.P["stamps"] and (key or not self.P.get("few")):
            i = self.nst; self.nst += 1
            op = 's_memrealtime' if self.P['stamps'] == 1 else 's_memtime'
            return [raw(f"{op} {sSTT} ; stamp"), raw("s_waitcnt lgkmcnt(0)", "wait_lg0"), salu("s_mov_b32", sST(i), sSTT[0])]
        return []

    def prologue(self):
        A, P = self.A, self.P
        q32 = P.get("q32", 1)
        A(raw("s_cmp_ge_u32 s2, 256"), raw("s_cbranch_scc1 L1_done", "branch"))
        if P.get("shift"): A(nop(0))
        A(self.stamp(True))
        if P["stamps"]: A(raw("s_memtime s[98:99]"))
        A(raw("s_load_dwordx8 s[4:11], s[0:1], 0"))
        A(valu("v_lshrrev_b32", vT, 6, vTID), valu("v_and_b32", vL, 63, vTID), valu("v_readfirstlane_b32", sW, vT))
        A(salu("s_and_b32", sT, S(2), 1), salu("s_lshr_b32", sT2, S(2), 6), salu("s_lshl2_add_u32", sB, sT, sT2))
        A(salu("s_bfe_u32", sHG, S(2), (2 << 16) | 1), salu("s_bfe_u32", sJ, S(2), (3 << 16) | 3), salu("s_lshl3_add_u32", sH, sHG, sJ))
        if P.get("planA"):
            A(salu("s_add_u32", sT, sT2, sJ), salu("s_bitcmp1_b32", None, sT, 0), raw("s_cbranch_scc0 LgrpB", "branch"))
    def prologue2(self, kvfirst=False):
        A, P = self.A, self.P
        q32 = P.get("q32", 1)
        if P["rot"] == 4:
            A(salu("s_and_b32", sT2, sT2, 2), salu("s_lshr_b32", sT, sJ, 1), salu("s_add_u32", sROT, sT2, sT), salu("s_mul_i32", sROT, sROT, 5), salu("s_lshr_b32", sROT, sROT, 1), salu("s_cmp_ge_u32", None, sROT, 10),
              salu("s_cselect_b32", sT, 10, 0), salu("s_sub_u32", sROT, sROT, sT))
        elif P["rot"] == 1:
            A(salu("s_lshl1_add_u32", sROT, sT2, sJ), salu("s_mul_i32", sROT, sROT, 5), salu("s_lshr_b32", sROT, sROT, 2), salu("s_cmp_ge_u32", None, sROT, 10),
              salu("s_cselect_b32", sT, 10, 0), salu("s_sub_u32", sROT, sROT, sT))
        elif P["rot"] == 2:
            A(salu("s_add_u32", sROT, sT2, sJ), salu("s_and_b32", sROT, sROT, 3), salu("s_mul_i32", sROT, sROT, 5), salu("s_lshr_b32", sROT, sROT, 1))
        elif P["rot"] == 3:
            A(salu("s_add_u32", sROT, sT2, sJ), salu("s_and_b32", sROT, sROT, 1), salu("s_mul_i32", sROT, sROT, 5))
        else:
            A(salu("s_mov_b32", sROT, 0))
        A(salu("s_lshl_b32", sW4K, sW, 12), salu("s_lshl_b32", sWQw, sW, 17), salu("s_mul_i32", sM0x, sW, 5120))
        row4, c16 = vT1, vT2
        A(valu("v_lshrrev_b32", row4, 4, vL), valu("v_and_b32", c16, 15, vL))
        L = []; B = lambda *x: L.extend(flat([i if isinstance(i, list) else [i] for i in x]))
        B(salu("s_lshl_b32", sT3, sB, 5), salu("s_add_u32", sT3, sT3, sH), salu("s_lshl_b32", sT3, sT3, 18))
        if P.get("hot"): B(salu("s_mov_b32", sT3, 0))
        B(valu("v_lshlrev_b32", vT, 1, row4), valu("v_xor_b32", vT, vT, c16), valu("v_lshlrev_b32", vT, 4, vT), valu("v_lshl_add_u32", vVD[0], row4, 8, vT))
        B(valu("v_xor_b32", vVD[1], 128, vVD[0]), valu("v_lshlrev_b32", vL16, 4, vL))
        for j in range(4):
            B(valu("v_add_u32", vT, 4 * j, row4), valu("v_xor_b32", vT, vT, c16), valu("v_lshlrev_b32", vT, 4, vT), valu("v_lshl_add_u32", vKD[j], row4, 8, vT))
        if kvfirst: B(raw("s_waitcnt lgkmcnt(0)", "wait"))
        B(salu("s_add_u32", sK[0], S(6), sT3), salu("s_addc_u32", sK[1], S(7), 0), salu("s_mov_b32", sK[2], 262144), salu("s_mov_b32", sK[3], "0x20000"))
        B(salu("s_add_u32", sV[0], S(8), sT3), salu("s_addc_u32", sV[1], S(9), 0), salu("s_mov_b32", sV[2], 262144), salu("s_mov_b32", sV[3], "0x20000"))
        KVL = L
        if kvfirst: A(KVL, flat([flat(self.kv_req(n)) for n in self.plan if self.plan[n] == "first"]))
        A(valu("v_lshlrev_b32", vT, 2 if q32 else 1, row4), valu("v_xor_b32", vT, vT, c16), valu("v_lshlrev_b32", vT, 4, vT), valu("v_lshl_add_u32", vWD[0], row4, 13, vT))
        if q32:
            for j in range(1, 4): A(valu("v_add_u32", vWD[j], j * (32768 - 1024), vWD[0]))
        else:
            A(valu("v_add_u32", vWD[1], 32768 - 1024, vWD[0]), valu("v_xor_b32", vWD[2], 128, vWD[0]))
            A(valu("v_add_u32", vWD[3], 3 * (32768 - 1024), vWD[2]), valu("v_add_u32", vWD[2], 2 * (32768 - 1024), vWD[2]))
        A(salu("s_mov_b32", sWQ[3], "0x20000"), salu("s_lshl_b32", sT, sH, 8), salu("s_sub_u32", sWQ[2], 5242880, sT))
        if P.get("pst"): A(self.stamp())
        A(raw("s_waitcnt lgkmcnt(0)", "wait"))
        A(salu("s_add_u32", sWQ[0], S(10), sT), salu("s_addc_u32", sWQ[1], S(11), 0))
        c0 = self.chunk_dma(0)
        A(flat(c0[:4]))
        row8, c8 = vT3, vT4
        A(valu("v_lshrrev_b32", row8, 3, vL), valu("v_and_b32", c8, 7, vL), salu("s_and_b32", sRG, sW, 1), salu("s_lshl_b32", sT2, sRG, 6), salu("s_mul_i32", sT, sW, 5 * 8 * 1280))
        A(valu("v_lshrrev_b32", vT, 1, row8), valu("v_xor_b32", vT, vT, c8), valu("v_lshlrev_b32", vT, 4, vT), valu("v_xor_b32", vT, sT2, vT))
        A(valu("v_mul_u32_u24", row8, 1280, row8), valu("v_add_u32", row8, sT, row8), valu("v_add_u32", vXD[0], row8, vT), valu("v_xor_b32", vT, 64, vT), valu("v_add_u32", vXD[1], row8, vT))
        A(valu("v_add_u32", vXD[2], 2 * (10240 - 1024), vXD[0]), valu("v_add_u32", vXD[3], 3 * (10240 - 1024), vXD[1]), valu("v_add_u32", vXD[4], 4 * 10240, vXD[0]), valu("v_add_u32", vXD[1], 10240 - 1024, vXD[1]))
        A(salu("s_mul_i32", sT, sB, 204800), salu("s_add_u32", sX[0], S(4), sT), salu("s_addc_u32", sX[1], S(5), 0), salu("s_mov_b32", sX[2], 204800), salu("s_mov_b32", sX[3], "0x20000"))
        A(flat(c0[4:]))
        if P.get("pst"): A(self.stamp())
        A(raw("s_load_dwordx8 s[12:19], s[0:1], 32"))
        if P.get("qtouch"):
            d = [V(240 + i) for i in range(3)]
            A(salu("s_lshr_b32", sT2, S(2), 6), salu("s_lshl2_add_u32", sT2, sT2, sW), salu("s_mul_i32", sT2, sT2, 40 * 8192))
            A(valu("v_lshrrev_b32", vT, 1, vL), valu("v_lshlrev_b32", vT, 13, vT), valu("v_and_b32", vZ, 1, vL), valu("v_lshl_add_u32", vT, vZ, 7, vT))
            A(buf_load("buffer_load_dword", d[0], vT, sWQ, sT2, 0, P["qpol"]))
            A(salu("s_lshl2_add_u32", sT, sJ, sW), salu("s_mul_i32", sT, sT, 6400), valu("v_min_u32", vZ, 49, vL), valu("v_lshlrev_b32", vZ, 7, vZ))
            A(buf_load("buffer_load_dword", d[1], vZ, sX, sT, 0, P["qpol"]))
            A(valu("v_and_b32", vT, 0xefff, vT), salu("s_add_u32", sT2, sT2, 32 * 8192))
            A(buf_load("buffer_load_dword", d[2], vT, sWQ, sT2, 0, P["qpol"]))
        if P.get("cpf"):
            n = P["cpf"]
            A(raw("s_getpc_b64 s[76:77]", wr=S(76, 2).regs()), label(f"Lpc{int(kvfirst)}"), salu("s_and_b32", S(76), S(76), "0xffffff80"), salu("s_mov_b32", S(78), f"L1_done-Lpc{int(kvfirst)}"), salu("s_mov_b32", S(79), "0x20000"))
            A(salu("s_lshr_b32", sT, S(2), 3), salu("s_and_b32", sT, sT, 512 // (4 * n) - 1), salu("s_lshl_b32", sT, sT, 2), salu("s_add_u32", sT, sT, sW), salu("s_mul_i32", sT, sT, n * 128))
            A(valu("v_lshlrev_b32", vZ, 7, vL), valu("v_cmp_gt_u32", VCC, n, vL), valu("v_mov_b32", vCNT, 1 << 30), valu("v_cndmask_b32", vZ, vCNT, vZ, VCC))
            A(buf_load("buffer_load_dword", vCNT, vZ, S(76, 4), sT))
        A(salu("s_lshr_b32", sKG, sW, 1))
        g, r, cc, q, t, f, b0, hh = (vTMP[i] for i in range(8))
        A(valu("v_lshrrev_b32", g, 4, vL), valu("v_bfe_u32", r, vL, 2, 2), valu("v_and_b32", cc, 3, vL), valu("v_and_b32", q, 15, vL))
        A(valu("v_and_b32", f, 1, g), valu("v_lshl_add_u32", f, f, 2, r))
        if q32:
            A(valu("v_lshrrev_b32", hh, 5, vL), valu("v_lshl_add_u32", b0, hh, 3, r), valu("v_lshlrev_b32", b0, 8, b0), valu("v_lshl_add_u32", b0, cc, 3, b0))
            A(valu("v_and_b32", t, 1, g), valu("v_lshl_add_u32", b0, t, 5, b0), valu("v_xor_b32", t, sW, r), valu("v_lshl_add_u32", b0, t, 6, b0))
            for a in range(2):
                A(valu("v_xor_b32", t, 64 * a, b0), valu("v_add_u32", vQA[0][a], STG[1], t), valu("v_add_u32", vQA[1][a], STG[0], t))
            A(valu("v_bfe_u32", t, vL, 1, 3), valu("v_xor_b32", t, t, hh), valu("v_lshlrev_b32", t, 4, t), valu("v_and_b32", b0, 31, vL), valu("v_lshl_add_u32", b0, b0, 7, t))
            A(salu("s_lshl_b32", sT, sRG, 13), salu("s_add_u32", sT2, sT, STG[1] + 16384), salu("s_add_u32", sT3, sT, STG[0] + 16384))
            for s_ in range(4):
                A(valu("v_xor_b32", t, 32 * s_, b0), valu("v_add_u32", vQB32[0][0][s_], sT2, t), valu("v_add_u32", vQB32[1][0][s_], sT3, t))
                A(valu("v_add_u32", vQB32[0][1][s_], STG[1] + 32768, t), valu("v_add_u32", vQB32[1][1][s_], STG[0] + 32768, t))
        else:
            A(valu("v_lshl_add_u32", b0, g, 3, r), valu("v_lshlrev_b32", b0, 8, b0), valu("v_lshl_add_u32", b0, cc, 3, b0))
            A(salu("s_lshl_b32", sT, sKG, 2), valu("v_xor_b32", t, sT, f), valu("v_lshl_add_u32", b0, t, 5, b0))
            for a in range(4):
                A(valu("v_xor_b32", t, 32 * a, b0), valu("v_add_u32", vQA[0][a], STG[1], t), valu("v_add_u32", vQA[1][a], STG[0], t))
            A(valu("v_lshrrev_b32", t, 1, q), valu("v_xor_b32", t, t, g), valu("v_lshlrev_b32", t, 4, t), valu("v_lshl_add_u32", b0, q, 7, t))
            A(salu("s_mul_i32", sT, sRG, 10240), salu("s_add_u32", sT2, sT, STG[1] + 16384), salu("s_add_u32", sT3, sT, STG[0] + 16384))
            A(valu("v_xor_b32", t, 64, b0), valu("v_add_u32", vQB[0][0], sT2, b0), valu("v_add_u32", vQB[0][1], sT2, t), valu("v_add_u32", vQB[1][0], sT3, b0), valu("v_add_u32", vQB[1][1], sT3, t))
        A(flat(self.chunk_dma(1)))
        if not kvfirst: A(KVL)
        L = []
        c = fbits(math.log2(math.e) / math.sqrt(128.0))
        B(salu("s_mov_b32", sTHR, fbits(P["thr"])), salu("s_mov_b32", sC2[0], c), salu("s_mov_b32", sC2[1], c))
        B(salu("s_lshl_b32", sT, sKG, 13))
        B(valu("v_xor_b32", t, q, g), valu("v_lshlrev_b32", t, 4, t), valu("v_lshl_add_u32", b0, q, 8, t), valu("v_add_u32", b0, sT, b0))
        for ks in range(4): B(valu("v_xor_b32", vKR[ks], 64 * ks, b0))
        B(valu("v_lshl_add_u32", b0, g, 2, r), valu("v_lshlrev_b32", b0, 8, b0), valu("v_lshl_add_u32", b0, cc, 3, b0), salu("s_add_u32", sT, sT, VS[0]), valu("v_add_u32", b0, sT, b0))
        B(salu("s_lshl_b32", sT, sKG, 2), valu("v_xor_b32", t, sT, f), valu("v_lshl_add_u32", b0, t, 5, b0))
        for j in range(8): B(valu("v_xor_b32", vVR[j], 32 * j, b0))
        for qb in range(5): B(valu("v_mov_b32", vLs[qb], 0))
        B(raw("s_waitcnt lgkmcnt(0)", "wait_lg0"))
        if P.get("capx") == 1 or P.get("cap2"): B(raw("s_getreg_b32 s8, hwreg(HW_REG_XCC_ID)", "salu", wr=S(8).regs()))
        if P.get("capx") == 2: B(raw("s_getreg_b32 s8, hwreg(HW_REG_XCC_ID)", "salu", wr=S(8).regs()), salu("s_not_b32", S(8), S(8)))
        B(salu("s_mov_b32", sWS[0], S(18)), salu("s_mov_b32", sWS[1], S(19)), salu("s_mov_b32", sWS[2], 32 << 20), salu("s_mov_b32", sWS[3], "0x20000"))
        if P["tail"]:
            B(salu("s_lshl_b32", sU0, sJ, 2), salu("s_lshl1_add_u32", sU1, sKG, sU0), salu("s_mul_i32", sT, sKG, 14), salu("s_add_u32", sU0, sU0, sT), salu("s_add_u32", sU0, sU0, 2))
            B(salu("s_lshl_b32", sKB, sHG, 5))
            B(salu("s_lshl_b32", sOB, sB, 7), salu("s_add_u32", sOB, sOB, sKB), salu("s_mul_i32", sOB, sOB, 10240), salu("s_mul_i32", sT, sRG, 5120), salu("s_add_u32", sOB, sOB, sT))
            B(salu("s_mul_i32", sT, sJ, 160), salu("s_add_u32", sWO[0], S(12), sT), salu("s_addc_u32", sWO[1], S(13), 0), salu("s_sub_u32", sWO[2], 5242880, sT), salu("s_mov_b32", sWO[3], "0x20000"))
            B(salu("s_mov_b32", sDBG[0], S(16)), salu("s_mov_b32", sDBG[1], S(17)), salu("s_mov_b32", sDBG[2], 256), salu("s_mov_b32", sDBG[3], "0x20000"))
            B(salu("s_mov_b32", sOUT[0], S(14)), salu("s_mov_b32", sOUT[1], S(15)), salu("s_mov_b32", sOUT[2], 1638400), salu("s_mov_b32", sOUT[3], "0x20000"))
            for m in range(5):
                B(valu("v_add_u32", t, 64 * m, vL), valu("v_mul_u32_u24", b0, 6554, t), valu("v_lshrrev_b32", b0, 16, b0), valu("v_mul_u32_u24", vZ, 1280 - 160, b0))
                B(valu("v_lshl_add_u32", vWO[m], t, 4, vZ))
                if 0 < m < 4: B(valu("v_subrev_u32", vWO[m], 1024 * m, vWO[m]))
        A(L)

    def one_lane(self, dst):
        return [valu("v_min_u32", dst, 1, vTID), valu("v_lshlrev_b32", dst, 30, dst)]
    def flag_store(self, val):
        o = self.one_lane(vZ) + [valu("v_mov_b32", vT, val), salu("s_lshl_b32", sT, sB, 5), salu("s_add_u32", sT, sT, sH), salu("s_lshl_b32", sT, sT, 7), salu("s_add_u32", sT, sT, FL)]
        return o + [buf_store("buffer_store_dword", vT, vZ, sWS, sT, 0, "sc1", "flag")]
    def wo_unit(self, i):
        pol = self.P["wpol"]; g = []
        pre = [salu("s_add_u32", S(6), sRG, 2 * i), salu("s_add_u32", S(7), S(6), sU0 if i else sU1), salu("s_and_b32", S(7), S(7), 31), salu("s_add_u32", S(7), S(7), sKB), salu("s_mul_i32", sWOo, S(7), 32 * 1280),
               salu("s_mul_i32", S(7), sKG, 26 if i < 3 else 10), salu("s_add_u32", S(6), S(6), S(7)), salu("s_mul_i32", S(6), S(6), UNIT), salu("s_mov_b32", M0, S(6))]
        for m in range(5):
            if m == 4: pre = [salu("s_add_u32", M0, S(6), 4096), nop(0)]
            g.append(pre + [buf_dma(vWO[m], sWO, sWOo, 1024 * m if m < 4 else 0, pol, ("wo", i))]); pre = []
        return g
    def wo_touch(self):
        o = [salu("s_and_b32", sT, sB, 3), salu("s_lshl_b32", sT, sT, 3), salu("s_add_u32", sT, sT, sJ), salu("s_lshl_b32", sT2, sHG, 5), salu("s_add_u32", sT, sT, sT2),
             salu("s_lshl_b32", sT, sT, 2), salu("s_add_u32", sT, sT, sW), salu("s_mul_i32", sT, sT, 10240), salu("s_mul_i32", sT2, sJ, 160), salu("s_sub_u32", sT, sT, sT2),
             valu("v_lshlrev_b32", vZ, 7, vL)]
        o += [salu("s_max_i32", sT, sT, 0), buf_load("buffer_load_dword", vBO[0], vZ, sWO, sT, 0, self.P["wpol"])]
        o2 = [valu("v_and_b32", vZ, 15, vL), valu("v_lshlrev_b32", vZ, 7, vZ), salu("s_add_u32", sT, sT, 8192), buf_load("buffer_load_dword", vBO[1], vZ, sWO, sT, 0, self.P["wpol"])]
        return [o, o2]
    def poll(self, name, srd, addr, soff, val, cmp, track=True):
        return [salu("s_mov_b32", sSPIN, 1 << 18), label(name), (buf_load("buffer_load_dword", vT1, addr, srd, soff, 0, "sc1") if track else raw(buf_load("buffer_load_dword", vT1, addr, srd, soff, 0, "sc1").txt)),
                raw("s_waitcnt vmcnt(0)", "wait_vm0" if track else "wait"),
                salu("s_sub_u32", sSPIN, sSPIN, 1), valu(cmp, VCC, val, vT1), raw(f"s_cbranch_scc1 {name}_x", "branch"), raw(f"s_cbranch_vccnz {name}", "branch", rd=VCC.regs()), label(name + "_x")]
    def poll1w(self, name, addr, val):
        if not self.P.get("p1w", 1): return self.poll(name, sWS, addr, sKVo, val, "v_cmp_gt_u32")
        return [salu("s_cmp_eq_u32", None, sW, self.P.get("pw", 3)), raw(f"s_cbranch_scc0 {name}_x", "branch")] + self.poll(name, sWS, addr, sKVo, val, "v_cmp_gt_u32", track=False) + [barrier()]
    def chunk_dma(self, c):
        pol = self.P["qpol"]; base = STG[c % 3]; tag = ("c", c); g = []
        pre = [salu("s_lshl_b32", sWQo, sROT, 19), salu("s_add_u32", M0, sW4K, base), salu("s_add_u32", sWQo, sWQo, sWQw)]
        imm = [0, 1024, 2048, 3072]
        for j in range(4):
            g.append((pre if j == 0 else []) + [buf_dma(vWD[j], sWQ, sWQo, imm[j], pol, tag)])
        for j in range(5):
            pre = []
            if j == 0: pre = [salu("s_add_u32", M0, sM0x, base + 16384), salu("s_lshl_b32", sXo, sROT, 7)]
            if j == 4: pre = [salu("s_add_u32", M0, sM0x, base + 16384 + 4096), salu("s_add_u32", sROT, sROT, 1), salu("s_cmp_eq_u32", None, sROT, 10), salu("s_cselect_b32", sROT, 0, sROT)]
            g.append(pre + [buf_dma(vXD[j], sX, sXo, 1024 * j if j < 4 else 0, pol, tag)])
        return g
    def kv_req(self, name, cap=None):
        kv, n = name[0], int(name[1:]); pol = self.P.get(kv.lower() + "pol", self.P["kvpol"]); g = []
        srd = sK if kv == "K" else sV; slot = (KS if kv == "K" else VS)[n & 3]
        for j in range(4):
            voff = vKD[j] if kv == "K" else vVD[j & 1]
            pre = [salu("s_add_u32", M0, sW4K, slot), salu("s_add_u32", sKVo, sW4K, n * 16384)] if j == 0 else []
            if cap and not self.P.get("capx"): pre = pre + [wait_vm(cap - 1)]
            if cap and self.P.get("cap2") and n <= self.P.get("cap2to", 99):
                self.nlab = getattr(self, "nlab", 0) + 1
                pre = pre + [salu("s_bitcmp1_b32", None, S(8), 0), raw(f"s_cbranch_scc1 Lc{self.nlab}", "branch"), raw(f"s_waitcnt vmcnt({self.P['cap2'] - 1})", "wait"), label(f"Lc{self.nlab}")]
            if cap and self.P.get("capx"):
                self.nlab = getattr(self, "nlab", 0) + 1
                pre = pre + [salu("s_bitcmp1_b32", None, S(8), 0), raw(f"s_cbranch_scc1 Lc{self.nlab}", "branch"), raw(f"s_waitcnt vmcnt({cap - 1})", "wait"), label(f"Lc{self.nlab}")]
            if name in self.P.get("reg", {}): g.append(pre[1:] + [buf_load("buffer_load_dwordx4", aSTG[name].sub(4 * j, 4), voff, srd, sKVo, 1024 * j, pol, name)])
            else: g.append(pre + [buf_dma(voff, srd, sKVo, 1024 * j, pol, name)])
        return g
    def kv_write(self, name):
        kv, n = name[0], int(name[1:]); slot = (KS if kv == "K" else VS)[n & 3]; ad = vTMP[18 + (kv == "V" and n > 0)]
        g = []
        for j in range(4):
            pre = [valu("v_add_u32", ad, sW4K, vL16), valu("v_add_u32", ad, slot, ad)] if j == 0 else []
            g.append(pre + [ds_write("ds_write_b128", ad, aSTG[name].sub(4 * j, 4), 1024 * j)])
        return g

    def q_reads(self, c, s):
        if "R" in self.P["x"] and (c, s) > (0, 1): return []
        st = STG[c % 3]; se = 1 if st == STG[0] else 0; rel = st - (STG[0] if se else STG[1]); p = s & 1
        if self.P.get("q32", 1):
            rA = lambda a, t: ds_read("ds_read_b64_tr_b16", aFA32(p, a).sub(2 * t, 2), vQA[se][a], rel + (16 * s + 4 * t) * 256)
            rB = lambda u: ds_read("ds_read_b128", aFB32(p, u), vQB32[se][u == 2][s], rel + (4096 if u == 1 else 0))
            return [rB(0), rA(0, 0), rA(0, 1), rB(2), rB(1), rA(1, 0), rA(1, 1)]
        rA = lambda a, t: ds_read("ds_read_b64_tr_b16", aFA(p, a).sub(2 * t, 2), vQA[se][a], rel + (32 * s + 4 * t) * 256)
        rB = lambda qb: ds_read("ds_read_b128", aFB(p, qb), vQB[se][s], rel + qb * 2048)
        return [rB(0), rA(0, 0), rA(0, 1), rB(1), rB(2), rB(3), rB(4), rA(1, 0), rA(1, 1), rA(2, 0), rA(2, 1), rA(3, 0), rA(3, 1)]
    def qproj(self):
        A, P = self.A, self.P; plan = self.plan; q32 = P.get("q32", 1)
        NS, NM = (4, 5) if q32 else (2, 20)
        A(flat([flat(self.kv_req(n)) for n in plan if plan[n] == "pro"]))
        if P.get("pst"): A(self.stamp())
        A(wait_vm_tag(("c", 0)), barrier(), self.stamp(), self.q_reads(0, 0))
        slots = [(c, s, i) for c in range(10) for s in range(NS) for i in range(NM)]
        gaps = {sl: [] for sl in slots}; idx = {sl: k for k, sl in enumerate(slots)}
        nxt = [0]
        def place(groups, start, step):
            k = max(start, nxt[0])
            for grp in groups:
                gaps[slots[min(int(k), len(slots) - 1)]] += grp; k += step
            nxt[0] = k
        BG = 2 if q32 else 5
        for c in range(10):
            for s_ in range(NS - 1):
                rd = self.q_reads(c, s_ + 1)
                for k, r_ in enumerate(rd): gaps[(c, s_, (k * NM) // max(len(rd), 1))].append(r_)
            if c < 9:
                rd = self.q_reads(c + 1, 0)
                gaps[(c, NS - 1, BG)] += [wait_lgkm(0), wait_vm_tag(("c", c + 1)), barrier()] + (self.stamp() if P.get("qst") else [])
                for k, r_ in enumerate(rd): gaps[(c, NS - 1, BG + (k * (NM - BG)) // len(rd))].append(r_)
        u = 1 if q32 else 2
        place(self.chunk_dma(2), 1, u)
        for c in range(10):
            for n in plan:
                if plan[n] == c: place(self.kv_req(n), idx[(c, 0, 0)], u)
            for n, when in P.get("reg", {}).items():
                if when == c: assert c >= 8 and n in ("V0", "K3"); place(self.kv_write(n), idx[(c, 0, 0)], u)
            if c + 3 < 10 and "Q" not in P["x"]: place(self.chunk_dma(c + 3), idx[(c, NS - 1, BG + 1)], P.get("qsp", 1.5) * u)
            for n in plan:
                if plan[n] == c + 0.5: place(self.kv_req(n), idx[(c, 0, 0)], u)
        if P.get("qov", 1) and not q32:
            pre_, cv = self.q_conv()
            for k, i_ in enumerate(pre_): gaps[(9, 0, k)].append(i_)
            self.qleft = []
            for k, grp in enumerate(cv):
                if k + 5 < 20: gaps[(9, 1, k + 5)] += grp
                else: self.qleft += grp
        for (c, s_, i) in slots:
            p = s_ & 1; z = (c == 0 and s_ == 0)
            if q32:
                a, u_ = [(0, 0), (0, 2), (0, 1), (1, 0), (1, 1)][i]; d = vACC32(i)
                m = mfma32(d, aFA32(p, a), aFB32(p, u_), 0 if z else d)
            else:
                a, qb = divmod(i, 5)
                m = mfma16(vACC(a, qb), aFA(p, a), aFB(p, qb), 0 if z else vACC(a, qb))
            A(m, gaps[(c, s_, i)])
    def q_conv(self):
        P = self.P; L = []; A = lambda *x: L.extend(x); cv = []
        g, q, t, hh, wa, ra, wb, wc = vTMP[0], vTMP[3], vTMP[4], vTMP[7], vTMP[8], vTMP[9], vTMP[10], vTMP[11]
        A(salu("s_mul_i32", sT, sRG, 20480), salu("s_add_u32", sT, sT, QX))
        A(salu("s_lshl_b32", sT2, sKG, 14), salu("s_add_u32", sT2, sT2, sT), valu("v_add_u32", vE[0], sT2, vL16), salu("s_mul_i32", sT2, sKG, -8192), salu("s_add_u32", sT2, sT2, 4096))
        qra = vE + [ra]; self.qra = qra
        for qb in range(1, 5): A(valu("v_add_u32", qra[qb], sT2, qra[qb - 1]))
        def conv(acc, ad, off):
            d = vTMP.sub(12 + 2 * (conv.k % 3), 2); conv.k += 1
            return [valu("v_pk_mul_f32", acc.sub(0, 2), acc.sub(0, 2), sC2), valu("v_pk_mul_f32", acc.sub(2, 2), acc.sub(2, 2), sC2),
                    valu("v_cvt_pk_bf16_f32", d[0], acc[0], acc[1]), valu("v_cvt_pk_bf16_f32", d[1], acc[2], acc[3]), ds_write("ds_write_b64", ad, d, off)]
        conv.k = 0
        if P.get("q32", 1):
            A(valu("v_and_b32", t, 1, g), valu("v_lshlrev_b32", t, 12, t), valu("v_lshl_add_u32", t, q, 4, t), valu("v_lshl_add_u32", t, hh, 3, t))
            A(salu("s_lshl_b32", sT, sW, 10), salu("s_add_u32", sT2, sT, QX + 32768), valu("v_add_u32", wc, sT2, t), salu("s_lshl_b32", sT3, sRG, 14), salu("s_add_u32", sT3, sT3, QX))
            A(salu("s_add_u32", sT2, sT, sT3), valu("v_add_u32", wa, sT2, t), salu("s_xor_b32", sT, sT, 1024), salu("s_add_u32", sT2, sT, sT3), valu("v_add_u32", wb, sT2, t))
            for i, (ad, off) in enumerate([(wa, 0), (wc, 0), (wa, 8192), (wb, 0), (wb, 8192)]):
                for i4 in range(4): cv.append(conv(vACC32(i).sub(4 * i4, 4), ad, off + 256 * i4))
        else:
            A(salu("s_lshl_b32", sT2, sKG, 11), salu("s_add_u32", sT, sT, sT2))
            A(valu("v_lshrrev_b32", t, 1, g), valu("v_lshlrev_b32", wa, 8, t), valu("v_lshl_add_u32", wa, q, 4, wa), valu("v_and_b32", t, 1, g), valu("v_lshl_add_u32", wa, t, 3, wa), valu("v_add_u32", wa, sT, wa))
            for a in range(4):
                for qb in range(5): cv.append(conv(vACC(a, qb), wa, qb * 4096 + (a >> 1) * 1024 + (a & 1) * 512))
        return L, cv
    def q_finish(self):
        A, P = self.A, self.P
        if P.get("qov", 1) and not P.get("q32", 1): A(self.qleft)
        else:
            pre_, cv = self.q_conv(); A(pre_, flat(cv))
        qra = self.qra
        for n in self.plan:
            if self.plan[n] == 10: A(flat(self.kv_req(n)))
        A(wait_lgkm(0), wait_vm_tag("K0"), barrier(), self.stamp())
        self.qrd = [ds_read("ds_read_b128", aQ(qb, ks), qra[qb], ks * 1024) for ks in range(4) for qb in range(5)]

    def colmax(self, dst, src8, tmp):
        o = [valu("v_max3_f32", dst, src8[0], src8[1], src8[2]), valu("v_max3_f32", dst, dst, src8[3], src8[4]), valu("v_max3_f32", dst, dst, src8[5], src8[6]), valu("v_max_f32", dst, dst, src8[7])]
        return o
    def xlane(self, op, regs, tmps):
        o = []
        for sw in ("v_permlane32_swap_b32", "v_permlane16_swap_b32"):
            o += [valu("v_mov_b32", t, r) for r, t in zip(regs, tmps)]
            o += [valu(sw, r, t) for r, t in zip(regs, tmps)]
            o += [valu(op, r, r, t) for r, t in zip(regs, tmps)]
        return o
    def softmax_list(self, a):
        Sx, Px = vS[a], vP[a]; o = []
        for e in range(41):
            if e < 40: o.append(valu("v_exp_f32", vE[e & 3], Sx[e]))
            p = e - 1
            if p >= 0:
                qb, j = divmod(p, 8)
                if j == 1: o.append(valu("v_add_f32", vBS[qb], vE[(p - 1) & 3], vE[p & 3]))
                elif j > 1: o.append(valu("v_add_f32", vBS[qb], vBS[qb], vE[p & 3]))
                if j & 1: o.append(valu("v_cvt_pk_bf16_f32", Px[4 * qb + (j >> 1)], vE[(p - 1) & 3], vE[p & 3]))
        x = self.P["x"]
        if "e" in x: o = [i for i in o if not i.txt.startswith("v_exp")]
        if "a" in x: o = [i for i in o if not i.txt.startswith("v_add")]
        if "c" in x: o = [i for i in o if not i.txt.startswith("v_cvt")]
        return o
    def slow_path(self, a):
        dl = [vTMP[i] for i in range(5)]; tm = [vTMP[5 + i] for i in range(5)]; ff = [vTMP[10 + i] for i in range(5)]
        o = [label(f"Lslow{a}"), nop(15)]
        for qb in range(5): o += self.colmax(dl[qb], vS[a].sub(8 * qb, 8), None)
        o += self.xlane("v_max_f32", dl, tm)
        for qb in range(5): o += [valu("v_max_f32", dl[qb], 0, dl[qb]), valu("v_exp_f32", ff[qb], Neg(dl[qb]))]
        for qb in range(5):
            for e in range(4): o.append(valu("v_sub_f32", vNM[4 * qb + e], vNM[4 * qb + e], dl[qb]))
            for e in range(8): o += [valu("v_sub_f32", vS[a][8 * qb + e], vS[a][8 * qb + e], dl[qb]), valu("v_sub_f32", vS[a ^ 1][8 * qb + e], vS[a ^ 1][8 * qb + e], dl[qb])]
            o.append(valu("v_mul_f32", vLs[qb], vLs[qb], ff[qb]))
        for j in range(8):
            for qb in range(5):
                for k in range(4): o.append(valu("v_accvgpr_read_b32", vE[k], aO(j, qb)[k]))
                for k in range(4): o.append(valu("v_mul_f32", vE[k], vE[k], ff[qb]))
                for k in range(4): o.append(valu("v_accvgpr_write_b32", aO(j, qb)[k], vE[k]))
        o += self.softmax_list(a)
        o += [nop(4), raw(f"s_setpc_b64 {sRET}", "branch")]
        return o

    def attention(self):
        A, P = self.A, self.P; x = P["x"]; plan = P["plan"]
        JORD = [4, 5, 6, 7, 0, 1, 2, 3]
        frags = []
        for n in range(-1, 17):
            if n + 1 <= 15: frags += [(n, f) for f in range(8)]
            if n - 1 >= 0: frags += [(n, f) for f in range(8, 16)]
        ring = {fr: aRING[i % 4] for i, fr in enumerate(frags)}
        for f in range(10, 16): ring[(16, f)] = Ac(176 + 4 * (f - 10), 4)
        slots = [(n, f, qb) for (n, f) in frags for qb in range(5)]
        gaps = {sl: [] for sl in slots}; pre = {sl: [] for sl in slots}; idx = {sl: k for k, sl in enumerate(slots)}
        def reads(fr):
            n, f = fr
            if f < 8:
                kb, ks = f >> 2, f & 3
                return [] if "k" in x else [ds_read("ds_read_b128", ring[fr], vKR[ks], KS[(n + 1) & 3] + kb * 4096)]
            j = JORD[f - 8]
            return [] if "v" in x else [ds_read("ds_read_b64_tr_b16", ring[fr].sub(2 * t, 2), vVR[j], VS[(n - 1) & 3] - VS[0] + t * 4096) for t in range(2)]
        def mf(sl):
            n, f, qb = sl
            if f < 8:
                b = n + 1; kb, ks = f >> 2, f & 3; d = vS[b & 1].sub(8 * qb + 4 * kb, 4)
                return mfma16(d, ring[(n, f)], aQ(qb, ks), d if ks else (0 if b == 0 else vNM.sub(4 * qb, 4)))
            b = n - 1; j = JORD[f - 8]; d = aO(j, qb)
            return mfma16(d, ring[(n, f)], vP[b & 1].sub(4 * qb, 4), 0 if b == 0 else d)
        head = []
        LA = 2
        done = set(plan)
        for i, fr in enumerate(frags):
            n, f = fr
            first = (i == [k for k, z in enumerate(frags) if z[0] == n][0])
            if i < LA: tgt = [head, head]
            else:
                base = idx[frags[i - LA] + (0,)]
                tgt = [gaps[slots[base + 1]], gaps[slots[base + 3]]]
            if first and n >= 0:
                sy = [wait_lgkm(0)]
                if n + 1 <= 15: sy.append(wait_vm_tag(f"K{n+1}"))
                if n - 1 >= 0: sy.append(wait_vm_tag(f"V{n-1}"))
                sy += [barrier()] + (self.stamp() if (n % (8 if P.get("qst") else 2) == 0 and not P.get("gst")) or (P.get("gst") and n >= 13) else [])
                tgt[0] += sy
                req = []
                ld = P.get("lead", 3)
                for m in range(0, n + ld + 1):
                    for nm in ([f"K{m+1}"] if m + 1 <= 15 else []) + ([f"V{m-1}"] if 0 <= m - 1 <= 15 else []):
                        if nm not in done: done.add(nm); req += self.kv_req(nm, P.get("cap") if P.get("capfrom", 1) <= n <= P.get("capto", 99) else None)
                if n == 0:
                    wr_ = []
                    for nm, when in P.get("reg", {}).items():
                        if when >= 10: wr_ += self.kv_write(nm)
                    req = req[:4] + wr_ + req[4:]
                if "d" in x and n >= 1: req = []
                if P["tail"]:
                    if n == 1:
                        req += [[salu("s_min_u32", sT, sH, 1), salu("s_lshl_b32", sT, sT, 30), valu("v_lshrrev_b32", vZ, 5, vTID), valu("v_min_u32", vZ, 1, vZ), valu("v_lshlrev_b32", vZ, 30, vZ),
                                 valu("v_lshl_add_u32", vZ, vL, 7, vZ), valu("v_add_u32", vZ, sT, vZ), valu("v_mov_b32", vT, 0), salu("s_lshl_b32", sT, sB, 12), salu("s_add_u32", sT, sT, FL),
                                 buf_store("buffer_store_dword", vT, vZ, sWS, sT, 0, "sc1", "flag")]]
                    if n == 5:
                        req += [[wait_vm_tag("flag"), salu("s_min_u32", sT, sH, 1), salu("s_lshl_b32", sT, sT, 30), valu("v_mov_b32", vT, 1)] + self.one_lane(vZ) +
                                [valu("v_add_u32", vZ, sT, vZ), salu("s_lshl_b32", sT, sB, 2), buf_store("buffer_store_dword", vT, vZ, sDBG, sT, 0, "sc1")]]
                    if n == P.get("wtouch", -1): req += self.wo_touch()
                    if n == 12: req += [[valu("v_mov_b32", vZ, 0), salu("s_lshl_b32", sT, sB, 2), buf_load("buffer_load_dword", vCNT, vZ, sDBG, sT, 0, "sc1")]]
                    for i_, n_ in enumerate(P.get("wo1", [13, 14, 14])):
                        if n == n_: req += self.wo_unit(i_)
                sp = P.get("sp", 8) if 0 < n < 13 else (2 if n in (0, 15, 16) else 4)
                for q_, grp in enumerate(req): gaps[slots[base + 4 + sp * q_]] += grp
            rd = reads(fr)
            if n == 16 and f >= 10: tgt = [gaps[slots[idx[(16, 8, 0)] + f - 10]]] * 2
            for k, r_ in enumerate(rd): tgt[k].append(r_)
        for n in range(0, 16):
            have = [sl for sl in slots if sl[0] == n]
            if n == 0:
                dl = [vTMP[i] for i in range(5)]; tm = [vTMP[5 + i] for i in range(5)]; o = []
                for qb in range(5): o += self.colmax(dl[qb], vS[0].sub(8 * qb, 8), None)
                o += self.xlane("v_max_f32", dl, tm)
                for qb in range(5):
                    for e in range(4): o.append(valu("v_sub_f32", vNM[4 * qb + e], 0, dl[qb]))
                for qb in range(5):
                    for e in range(8): o.append(valu("v_sub_f32", vS[0][8 * qb + e], vS[0][8 * qb + e], dl[qb]))
                pre[have[0]] += o
            sm = self.softmax_list(n & 1)
            ng = len(have) - 4
            cost = [2 if i.trans else 1 for i in sm]; tot = sum(cost); acc = 0
            for i_, c_ in zip(sm, cost):
                gaps[have[min(ng - 1, (acc * ng) // max(tot, 1))]].append(i_); acc += c_
            addl = [valu("v_add_f32", vLs[qb], vLs[qb], vBS[qb]) for qb in range(5)]
            if n > 0 and "b" not in x:
                gaps[have[-4]].append(valu("v_max3_f32", vT1, vBS[0], vBS[1], vBS[2]))
                gaps[have[-3]].append(valu("v_max3_f32", vT1, vT1, vBS[3], vBS[4]))
                gaps[have[-2]].append(valu("v_cmp_nge_f32", VCC, sTHR, vT1))
                gaps[have[-1]] += [raw(f"s_cbranch_vccnz Lstub{n}", "branch", rd=VCC.regs()), label(f"Lret{n}")]
                self.stubs += [label(f"Lstub{n}"), raw(f"s_call_b64 {sRET}, Lslow{n & 1}", "branch"), raw(f"s_branch Lret{n}", "branch")]
            gaps[have[-1]] += addl
        last = [sl for sl in slots if sl[0] == 16]
        wr, mlw, mlw2, mlr, mlr2 = vTMP[15], vTMP[16], vTMP[17], vTMP[18], vTMP[19]
        nm = [vTMP[i] for i in range(5)]; ll = [vTMP[5 + i] for i in range(5)]
        so, sp = self.so, self.sp
        ex = self.xlane("v_add_f32", vLs, [vTMP[5 + i] for i in range(5)])
        ad = [salu("s_mul_i32", sT, sW, 20480), valu("v_add_u32", wr, sT, vL16), salu("s_mul_i32", sT, sW, 320), salu("s_add_u32", sT, sT, MLN), valu("v_and_b32", mlr, 15, vL), valu("v_lshl_add_u32", mlw, mlr, 2, sT),
              valu("v_add_u32", mlw2, MLL - MLN, mlw), salu("s_xor_b32", sT2, sW, 2), salu("s_mul_i32", sT, sT2, 320), salu("s_add_u32", sT, sT, MLN), valu("v_lshl_add_u32", mlr, mlr, 2, sT), valu("v_add_u32", mlr2, MLL - MLN, mlr),
              salu("s_mul_i32", sT, sT2, 20480), valu("v_add_u32", vT4, sT, vL16)]
        h15 = [sl for sl in slots if sl[0] == 15]
        for k, i_ in enumerate(ad): gaps[h15[2 * k]].append(i_)
        ex += [ds_write("ds_write_b32", mlw, vNM[4 * qb], 64 * qb) for qb in range(5)] + [ds_write("ds_write_b32", mlw2, vLs[qb], 64 * qb) for qb in range(5)]
        for k, i_ in enumerate(ex): gaps[last[(k * 10) // len(ex)]].append(i_)
        gaps[last[11]] += [wait_lgkm(0), barrier()]
        gaps[last[11]] += [ds_read("ds_read_b32", nm[qb], mlr, 64 * (4 - qb)) for qb in range(5)] + [ds_read("ds_read_b32", ll[qb], mlr2, 64 * (4 - qb)) for qb in range(5)]
        for k in range(20):
            j, qb = 4 + k // 5, k % 5
            gaps[last[min(39, max(12 + k, k + 4))]].append(ds_write("ds_write_b128", wr, aO(j, qb), MX + k * 1024))
        fa = []
        for qb in range(5):
            fa += [valu("v_min_f32", vE[qb & 3], nm[qb], vNM[4 * qb]), valu("v_sub_f32", so[qb][0], vE[qb & 3], vNM[4 * qb]), valu("v_sub_f32", sp[qb][0], vE[qb & 3], nm[qb])]
        for qb in range(5): fa += [valu("v_exp_f32", so[qb][0], so[qb][0]), valu("v_exp_f32", sp[qb][0], sp[qb][0])]
        for qb in range(5): fa += [valu("v_mul_f32", ll[qb], ll[qb], sp[qb][0])]
        for qb in range(5): fa += [valu("v_fmac_f32", ll[qb], vLs[qb], so[qb][0])]
        for qb in range(5): fa += [valu("v_rcp_f32", ll[qb], ll[qb])]
        for qb in range(5): fa += [valu("v_mul_f32", so[qb][0], so[qb][0], ll[qb]), valu("v_mul_f32", sp[qb][0], sp[qb][0], ll[qb])]
        for qb in range(5): fa += [valu("v_mov_b32", so[qb][1], so[qb][0]), valu("v_mov_b32", sp[qb][1], sp[qb][0])]
        for k, i_ in enumerate(fa): gaps[last[16 + (k * 24) // len(fa)]].append(i_)
        A(head[:0], self.qrd[:5], head, self.qrd[5:])
        for sl in slots:
            A(pre[sl], mf(sl) if "m" not in x else nop(2), gaps[sl])

    def epilogue(self):
        A, P = self.A, self.P
        rd = vT4; so, sp = self.so, self.sp
        T = lambda j, qb: V(40 + 4 * (5 * j + qb), 4)
        order = [(ks, qb, u) for ks in range(2) for qb in range(5) for u in range(2)]
        prep = lambda j, qb: [valu("v_accvgpr_read_b32", T(j, qb)[e], aO(j, qb)[e]) for e in range(4)] + [valu("v_pk_mul_f32", T(j, qb).sub(2 * e, 2), T(j, qb).sub(2 * e, 2), so[qb]) for e in range(2)]
        NP = P.get("npre", 20)
        for k, (ks, qb, u) in enumerate(order[:NP]): A(prep(2 * ks + u, qb))
        A(salu("s_lshl_b32", sT, sB, 5), salu("s_add_u32", sT, sT, sH), salu("s_lshl_b32", sT, sT, 1), salu("s_add_u32", sT, sT, sKG), salu("s_mul_i32", sT, sT, 20480))
        A(salu("s_mul_i32", sT2, sRG, 5120), salu("s_add_u32", sWQo, sT, sT2), salu("s_add_u32", sXo, sWQo, 10240))
        A(salu("s_lshl_b32", sT, sKG, 12), salu("s_mul_i32", sT3, sKG, -2048), salu("s_add_u32", sT3, sT3, 1024), valu("v_add_u32", vBO[0], sT, vL16))
        for ii in range(1, 5): A(valu("v_add_u32", vBO[ii], sT3, vBO[ii - 1]))
        A(wait_lgkm(0), barrier(), self.stamp())
        RQ = [V(160 + 4 * i, 4) for i in range(5)] + [V(4 + 4 * i, 4) for i in range(4)] + [V(200, 4)]
        rdl = [ds_read("ds_read_b128", RQ[k % 10], rd, MX + ((2 * ks + u) * 5 + 4 - qb) * 1024) for k, (ks, qb, u) in enumerate(order)]
        A(rdl[:10])
        for k, (ks, qb, u) in enumerate(order):
            pk = vP[ks].sub(4 * qb, 4); t = T(2 * ks + u, qb)
            if k >= NP: A(prep(2 * ks + u, qb))
            A([valu("v_pk_fma_f32", t.sub(2 * e, 2), RQ[k % 10].sub(2 * e, 2), sp[qb], t.sub(2 * e, 2)) for e in range(2)])
            if k + 10 < 20: A(rdl[k + 10])
            if k == 15 and P["tail"] and P.get("w2a"): A(wait_lgkm(0), barrier())
            A([valu("v_cvt_pk_bf16_f32", pk[2 * u + e], t[2 * e], t[2 * e + 1]) for e in range(2)])
            if u: A(buf_store("buffer_store_dwordx4", pk, vBO[qb], sWS, sXo if ks else sWQo, 0, P["opol"], "ost"))
        if P["tail"]: self.tail()
        if P["stamps"]:
            A(wait_vm(0), self.stamp(True), raw("s_memtime s[96:97]"), raw("s_waitcnt lgkmcnt(0)", "wait"), salu("s_sub_u32", S(96), S(96), S(98)))
            A(salu("s_lshl_b32", sT, S(2), 2), salu("s_add_u32", sT, sT, sW), salu("s_lshl_b32", sT, sT, 7), salu("s_add_u32", sT, sT, STAMP_OFF), valu("v_mov_b32", vT, 0))
            for i in range(self.nst):
                A(valu("v_mov_b32", vT2, sST(i)), buf_store("buffer_store_dword", vT2, vT, sWS, sT, 4 * i))
            A(valu("v_mov_b32", vT2, S(96)), buf_store("buffer_store_dword", vT2, vT, sWS, sT, 4 * 31))
            if P.get("probe") is not None:
                A(salu("s_cmp_eq_u32", None, S(2), P.get("pwg", 101)), raw("s_cbranch_scc0 L1_done", "branch"), salu("s_cmp_eq_u32", None, sW, 0), raw("s_cbranch_scc0 L1_done", "branch"))
                A(salu("s_sub_u32", sT, sST(P["probe"]), sST(0)), salu("s_min_u32", sT, sT, 20000), salu("s_mul_i32", sT, sT, 4), salu("s_add_u32", sT, sT, sST(self.nst - 1)))
                A(label("Lspin"), raw("s_memrealtime s[96:97]"), raw("s_waitcnt lgkmcnt(0)"), salu("s_sub_u32", sT2, S(96), sT), salu("s_cmp_lt_i32", None, sT2, 0), raw("s_cbranch_scc1 Lspin", "branch"))
        A(label("L1_done"), raw("s_endpgm"))

    def tail(self):
        A, P = self.A, self.P
        g, r, cc, q, t, b0 = (vTMP[i] for i in range(6))
        A(valu("v_lshrrev_b32", g, 4, vL), valu("v_bfe_u32", r, vL, 2, 2), valu("v_and_b32", cc, 3, vL), valu("v_and_b32", q, 15, vL))
        A(valu("v_lshl_add_u32", b0, g, 2, r), valu("v_mul_u32_u24", b0, 160, b0), valu("v_lshl_add_u32", b0, cc, 3, b0))
        A(salu("s_mul_i32", sT, sKG, 26 * UNIT + 128), salu("s_mul_i32", sT2, sKG, 10 * UNIT + 128), salu("s_add_u32", sT2, sT2, 6 * UNIT))
        A(salu("s_mul_i32", sT3, sKG, -64), salu("s_add_u32", sT3, sT3, 32))
        A(valu("v_add_u32", vAR[0][0], sT, b0), valu("v_add_u32", vAR[1][0], sT2, b0))
        for aa in range(1, 5): A(valu("v_add_u32", vAR[0][aa], sT3, vAR[0][aa - 1]), valu("v_add_u32", vAR[1][aa], sT3, vAR[1][aa - 1]))
        A(salu("s_lshl_b32", sT, sB, 5), salu("s_lshl_b32", sT2, sHG, 3), salu("s_add_u32", sT, sT, sT2))
        A(salu("s_lshl_b32", sT, sT, 7), salu("s_add_u32", sKVo, sT, FL), valu("v_and_b32", t, 7, vL), valu("v_max_u32", t, 1, t), valu("v_xor_b32", t, sJ, t), valu("v_lshlrev_b32", t, 7, t))
        A(valu("v_cmp_gt_u32", VCC, 1, vCNT), raw("s_cbranch_vccz Lcnt_ok", "branch", rd=VCC.regs()))
        A(valu("v_mov_b32", vZ, 0), salu("s_lshl_b32", sT, sB, 2), self.poll("Lpoll0", sDBG, vZ, sT, 1, "v_cmp_gt_u32", track=False), label("Lcnt_ok"))
        W2 = P.get("w2", 0)
        W2A = P.get("w2a", 0)
        for i in range(3, 3 + W2A): A(flat(self.wo_unit(i)))
        A(wait_vm_tag("ost"), barrier(), self.stamp(), self.flag_store(1))
        for i in range(3 + W2A, 3 + W2): A(flat(self.wo_unit(i)))
        A(self.poll1w("Lpoll1", t, 1), self.stamp())
        def breq(u):
            pre = [salu("s_add_u32", sT, sU0, u), salu("s_and_b32", sT, sT, 31), salu("s_mul_i32", sT, sT, 10240), salu("s_add_u32", sBo, sOB, sT)]
            g_ = []
            for ii in range(5):
                g_.append(pre + [buf_load("buffer_load_dwordx4", gB(u, ii), vBO[ii], sWS, sBo, 0, P.get("bpol", "sc1"))]); pre = []
            return g_
        frags = [(u, aa) for u in range(16) for aa in range(5)]
        ring = {fr: aRING[i % 4] for i, fr in enumerate(frags)}
        slots = [(u, aa, ii) for (u, aa) in frags for ii in range(5)]
        gaps = {sl: [] for sl in slots}; idx = {sl: k for k, sl in enumerate(slots)}
        head = []
        for i, (u, aa) in enumerate(frags):
            se = 0 if u < 6 else 1; off = (u if u < 6 else u - 6) * UNIT
            rd = [ds_read("ds_read_b64_tr_b16", ring[(u, aa)].sub(2 * tt, 2), vAR[se][aa], off + tt * 2560) for tt in range(2)]
            if i < 2: head += rd
            else:
                base = idx[frags[i - 2] + (0,)]
                if aa == 0 and u >= 6 and u % 2 == 0 and (u == 6 or u // 2 >= 3 + W2):
                    gaps[slots[base + 1]] += ([wait_lgkm(0)] if u == 6 else []) + [wait_vm_tag(("wo", u // 2)), barrier()]
                gaps[slots[base + 1]].append(rd[0]); gaps[slots[base + 3]].append(rd[1])
        BD = P.get("bd", 3)
        A(head, flat(breq(2)), flat(breq(3)))
        seq = {}
        for u in range(4, 16 if "B" not in P["x"] else 4): seq.setdefault(max(u - BD, 0) if u - BD >= 1 else 0, []).extend(breq(u))
        WS = P.get("w2at", [0, 2, 4, 6, 8])
        for i in range(3 + W2, 8): seq.setdefault(WS[i - 3], []).extend(self.wo_unit(i))
        for u, gl in seq.items():
            for k, grp in enumerate(gl): gaps[slots[idx[(u, 0, 0)] + (k * 25) // len(gl)]] += grp
        wa, ra = vTMP[6], vTMP[7]
        def exc(dst, w_): return [salu("s_and_b32", sT, w_, 1), salu("s_mul_i32", sT, sT, 13312), salu("s_lshr_b32", sT2, w_, 1), salu("s_mul_i32", sT2, sT2, 26 * UNIT), salu("s_add_u32", sT, sT, sT2), valu("v_add_u32", dst, sT, vL16)]
        for k, i_ in enumerate(exc(wa, sW) + [salu("s_xor_b32", sT3, sW, 2)] + exc(ra, sT3)): gaps[slots[idx[(14, 0, 0)] + k]].append(i_)
        late = []
        for s_ in (15, 20, 16, 21, 12, 17, 22, 13, 18, 23, 14, 19, 24):
            w_ = ds_write("ds_write_b128", wa, gACC(s_), (s_ - 12) * 1024)
            k = idx[(15, s_ % 5, s_ // 5)] + 8
            if k < len(slots): gaps[slots[k]].append(w_)
            else: late.append(w_)
        for (u, aa, ii) in slots:
            d = gACC(5 * ii + aa)
            if P.get("gst") and aa == 0 and ii == 0 and u in (2, 4, 6, 8, 10, 12, 14): A(self.stamp())
            if P.get("gw", 1) and u >= 2 and aa == 0 and ii == 0: A(wait_lgkm_for(gB(u, 4)))
            A(mfma16(d, ring[(u, aa)], gB(u, ii) if u >= 2 else vP[u].sub(4 * ii, 4), 0 if u == 0 else d), gaps[(u, aa, ii)])
        A(self.stamp(), late)
        A(salu("s_lshl_b32", sT, sB, 3), salu("s_add_u32", sT, sT, sJ), salu("s_mul_i32", sWQo, sT, 4 * 26624), salu("s_add_u32", sWQo, sWQo, PB))
        A(salu("s_mul_i32", sT, sHG, 26624), salu("s_add_u32", sXo, sWQo, sT), salu("s_lshl_b32", sT, sRG, 10), salu("s_add_u32", sT3, sXo, sT), salu("s_add_u32", sT3, sT3, 24576))
        A(salu("s_lshl_b32", sT, sKG, 30), valu("v_add_u32", vT3, sT, vL16))
        A(salu("s_mul_i32", sT, sRG, 12288), salu("s_mul_i32", sT2, sKG, 6144), salu("s_add_u32", sT, sT, sT2), salu("s_add_u32", sXo, sXo, sT), valu("v_add_u32", vT2, 4096, vL16))
        A(wait_lgkm(0), barrier())
        RR = lambda s_: V(120 + 4 * s_, 4) if s_ < 10 else V(180 + 4 * (s_ - 10), 4)
        for s_ in range(13): A(ds_read("ds_read_b128", RR(s_), ra, (12 - s_) * 1024))
        for p in range(7):
            pk = V(192 + 4 * (p & 1), 4)
            for z in range(2 if p < 6 else 1):
                s_ = 2 * p + z
                A([valu("v_pk_add_f32", gACC(s_).sub(2 * e, 2), gACC(s_).sub(2 * e, 2), RR(s_).sub(2 * e, 2)) for e in range(2)])
                A([valu("v_cvt_pk_bf16_f32", pk[2 * z + e], gACC(s_)[2 * e], gACC(s_)[2 * e + 1]) for e in range(2)])
            if p < 6: A(buf_store("buffer_store_dwordx4", pk, vL16 if p < 4 else vT2, sWS, sXo, 1024 * (p & 3), "sc1"))
            else: A(buf_store("buffer_store_dwordx4", pk, vT3, sWS, sT3, 0, "sc1"))
        oa = [vTMP[8], vTMP[9]]; it, m_, i_ = vTMP[10], vTMP[11], vTMP[12]
        sIT = [sWQw, sM0x]
        for k in range(2):
            A(salu("s_lshl_b32", sT, sHG, 2), salu("s_add_u32", sT, sT, sW), salu("s_add_u32", sT, sT, 16 * k))
            A(salu("s_lshl_b32", sIT[k], sT, 10), salu("s_add_u32", sIT[k], sIT[k], sWQo))
            A(salu("s_mul_i32", sT3, sT, 43), salu("s_lshr_b32", sT3, sT3, 8), salu("s_mul_i32", sBo, sT3, 6), salu("s_sub_u32", sBo, sT, sBo), salu("s_lshr_b32", sT2, sT3, 1), salu("s_and_b32", sT3, sT3, 1))
            if k == 1:
                A(salu("s_cmp_ge_u32", None, sT, 24), salu("s_cselect_b32", sT2, sBo, sT2), salu("s_cselect_b32", sBo, 6, sBo))
            A(valu("v_and_b32", m_, 1, g), salu("s_lshl_b32", sBo, sBo, 1), valu("v_add_u32", m_, sBo, m_))
            if k == 1: A(valu("v_cmp_lt_u32", VCC, 12, m_))
            A(salu("s_mul_i32", sBo, sT3, 24), salu("s_mul_i32", sT3, sT3, -2), salu("s_add_u32", sT3, sT3, 1), valu("v_mul_i32_i24", m_, sT3, m_), valu("v_add_u32", m_, sBo, m_))
            A(valu("v_mul_u32_u24", i_, 52, m_), valu("v_lshrrev_b32", i_, 8, i_), valu("v_mul_u32_u24", it, 5, i_), valu("v_sub_u32", m_, m_, it))
            A(valu("v_lshl_add_u32", i_, i_, 4, q), salu("s_mul_i32", sT2, sT2, 80), salu("s_mul_i32", sBo, sB, 160), salu("s_add_u32", sT2, sT2, sBo), valu("v_add_u32", i_, sT2, i_))
            A(valu("v_mul_u32_u24", i_, 1280, i_), valu("v_lshl_add_u32", i_, m_, 5, i_), valu("v_lshrrev_b32", it, 1, g), valu("v_lshl_add_u32", i_, it, 4, i_), salu("s_mul_i32", sBo, sJ, 160), valu("v_add_u32", oa[k], sBo, i_))
            if k == 1:
                A(valu("v_mov_b32", it, 1 << 30), valu("v_cndmask_b32", oa[1], oa[1], it, VCC))
                A(salu("s_cmp_ge_u32", None, sT, 26), salu("s_cselect_b32", sT, 1 << 30, 0), valu("v_add_u32", vT4, sT, vL16), valu("v_add_u32", oa[1], sT, oa[1]))
        A(salu("s_lshl_b32", sT, sB, 5), salu("s_add_u32", sT, sT, sJ), salu("s_lshl_b32", sT, sT, 7), salu("s_add_u32", sKVo, sT, FL), valu("v_lshlrev_b32", t, 10, cc))
        A(wait_vm(0), barrier(), self.stamp(), self.flag_store(2))
        A(self.poll1w("Lpoll2", t, 2), self.stamp())
        src = lambda k, h_: V(40 + 16 * k + 4 * h_, 4)
        for k in range(2):
            for h_ in range(4):
                A(buf_load("buffer_load_dwordx4", src(k, h_), vT4 if k else vL16, sWS, sIT[k], 0, "sc1"))
                if h_ < 3: A(salu("s_add_u32", sIT[k], sIT[k], 26624))
        A(salu("s_mov_b32", sT, "0xffff0000"))
        for k in range(2):
            acc = V(80 + 24 * k, 8); tmp = V(88 + 24 * k, 8); pk = V(96 + 24 * k, 4)
            for h_ in range(4):
                d = acc if h_ == 0 else tmp
                for e in range(4): A(valu("v_lshlrev_b32", d[2 * e], 16, src(k, h_)[e]), valu("v_and_b32", d[2 * e + 1], sT, src(k, h_)[e]))
                if h_: A([valu("v_pk_add_f32", acc.sub(2 * e, 2), acc.sub(2 * e, 2), tmp.sub(2 * e, 2)) for e in range(4)])
            A([valu("v_cvt_pk_bf16_f32", pk[e], acc[2 * e], acc[2 * e + 1]) for e in range(4)])
            A(valu("v_permlane16_swap_b32", pk[0], pk[2]), valu("v_permlane16_swap_b32", pk[1], pk[3]))
            A(buf_store("buffer_store_dwordx4", pk, oa[k], sOUT, 0, 0, P["outpol"]))

    def build(self):
        P = self.P
        self.prologue(); entry = self.p; out = []
        ne = len(finish(list(entry)))
        if P.get("planA"):
            nst = self.nst
            self.p = list(entry); self.plan = P["planA"]
            self.prologue2(True); self.qproj(); self.q_finish(); self.A(raw("s_branch Ljoin", "branch"), label("LgrpB"))
            out = finish(self.p); self.nst = nst
        self.p = list(entry); self.plan = P["plan"]
        self.prologue2(); self.qproj(); self.q_finish(); self.A(label("Ljoin")); self.attention(); self.epilogue()
        rest = finish(self.p, True)
        out = out + rest[ne:] if out else rest
        out += self.stubs
        if self.stubs:
            for a in range(2): out += finish(self.slow_path(a))
        if P.get("al"): out = align8(out, tuple(P["al"].split(",")), verbose=True)
        return out

def main():
    P = dict(DEF)
    if len(sys.argv) > 2: P.update(json.loads(sys.argv[2]))
    out = sys.argv[1]
    hdr = open("standalone__gqa_block_cached__near_ridge.s.ref").read().split("; Override")[0] if P.get("hdr", 1) else ""
    s = hdr
    name = "standalone__gqa_block_cached__near_ridge_kernel"
    s += f"; @launch grid=(256,1,1) block=(256,1,1) lds={LDS1}\n"
    s += '.amdgcn_target "amdgcn-amd-amdhsa--gfx950"\n'
    s += kernel_header(name) + text(K1(P).build())
    s += kernel_desc(name, 512, 256)
    open(out, "w").write(s)

if __name__ == "__main__":
    main()
```
